```python
import torch

def _softmax(x, axis=-1):
    return torch.softmax(x, dim=axis)
def _gelu(x):
    return torch.nn.functional.gelu(x, approximate="tanh")
def _silu(x):
    return torch.nn.functional.silu(x)
def _sigmoid(x):
    return torch.sigmoid(x)
def _layernorm(x, axis=-1, eps=1e-5):
    m = x.mean(dim=axis, keepdim=True)
    v = x.var(dim=axis, keepdim=True, unbiased=False)
    return (x - m) / torch.sqrt(v + eps)
def _scatter_add(tgt, idx, src, axis=0):
    return tgt.clone().index_add_(axis, idx, src)
def _segment_sum(src, seg, n):
    out = torch.zeros((n,) + src.shape[1:], dtype=src.dtype)
    return out.index_add_(0, seg, src)
def _pad(x, pw):
    flat = tuple(v for pair in reversed(pw) for v in pair)
    return torch.nn.functional.pad(x, flat)

kernel_name = 'parallel_sum__ssm_conv_s4__dense_activation_relu__prompt'

def setup_inputs():

    _w = (lambda a: (lambda t: t.to(torch.bfloat16) if t.is_floating_point() else t)(torch.as_tensor(a)))
    def _A_setup():
        B, L, D, N = 1, 2048, 576, 128
        A_re = -(lambda _x: torch.exp(torch.as_tensor(_x)))((lambda *s: torch.randn(*s, dtype=torch.bfloat16) * 3.2)(D, N))
        A_im = torch.pi * (lambda *s: torch.randn(*s, dtype=torch.bfloat16) * 0.2)(D, N)
        B_re = (lambda *s: torch.randn(*s, dtype=torch.bfloat16) * 0.4)(D, N)
        B_im = (lambda *s: torch.randn(*s, dtype=torch.bfloat16) * 0.4)(D, N)
        C_re = (lambda *s: torch.randn(*s, dtype=torch.bfloat16) * 0.4)(D, N)
        C_im = (lambda *s: torch.randn(*s, dtype=torch.bfloat16) * 0.4)(D, N)
        log_dt = (lambda *s: torch.randn(*s, dtype=torch.bfloat16) * 0.2)(D) * 0.5 - 4.0
        Dskip = (lambda *s: torch.randn(*s, dtype=torch.bfloat16) * 0.4)(D)
        return {
            "u": _w((lambda *s: torch.randn(*s, dtype=torch.bfloat16) * 0.05)(B, L, D)),
            "A_re": _w(A_re),
            "A_im": _w(A_im),
            "B_re": _w(B_re),
            "B_im": _w(B_im),
            "C_re": _w(C_re),
            "C_im": _w(C_im),
            "log_dt": _w(log_dt),
            "Dskip": _w(Dskip),
        }
    _A_in = _A_setup()

    def _B_setup():
        B, S, D, Dff = 1, 2048, 576, 4608
        return {
            "x": _w((lambda *s: torch.randn(*s, dtype=torch.bfloat16) * 0.05)(B, S, D)),
            "w1": _w((lambda *s: torch.randn(*s, dtype=torch.bfloat16) * 0.05)(D, Dff)),
            "w2": _w((lambda *s: torch.randn(*s, dtype=torch.bfloat16) * 0.05)(Dff, D)),
        }
    _B_in = _B_setup()

    return {
        "A_u": _A_in["u"],
        "A_A_re": _A_in["A_re"],
        "A_A_im": _A_in["A_im"],
        "A_B_re": _A_in["B_re"],
        "A_B_im": _A_in["B_im"],
        "A_C_re": _A_in["C_re"],
        "A_C_im": _A_in["C_im"],
        "A_log_dt": _A_in["log_dt"],
        "A_Dskip": _A_in["Dskip"],
        "B_x": _B_in["x"],
        "B_w1": _B_in["w1"],
        "B_w2": _B_in["w2"],
    }

def reference(A_u, A_A_re, A_A_im, A_B_re, A_B_im, A_C_re, A_C_im, A_log_dt, A_Dskip, B_x, B_w1, B_w2):
    def _A_ref(u, A_re, A_im, B_re, B_im, C_re, C_im, log_dt, Dskip):
        Bsz, L, D = u.shape
        dt = torch.exp(log_dt)[:, None]
        A = A_re + 1j * A_im
        Bc = B_re + 1j * B_im
        Cc = C_re + 1j * C_im
        logdA = dt * A
        dB = dt * Bc
        l = (lambda x, dt: x.to(dt))(torch.arange(L), A_re.dtype)
        P = torch.exp(logdA[:, :, None] * l[None, None, :])
        K = torch.einsum("dn,dnl,dn->dl", Cc, P, dB).real
        L2 = 2 * L
        Kp = _pad(K, ((0, 0), (0, L)))
        up = (lambda x, *d: x.permute(*d))(u, 0, 2, 1)
        up = _pad(up, ((0, 0), (0, 0), (0, L)))
        Kf = (lambda x, axes=(-2,-1): torch.fft.rfft2(x.float(), dim=axes))(Kp[:, None, :], axes=(-2, -1))
        Uf = (lambda x, axes=(-2,-1): torch.fft.rfft2(x.float(), dim=axes))(up[:, :, None, :], axes=(-2, -1))
        Yf = Uf * Kf[None, :, :, :]
        y = (lambda x, s, axes=(-2,-1): torch.fft.irfft2(x, s=s, dim=axes).to(torch.bfloat16))(Yf, (1, L2), axes=(-2, -1))[:, :, 0, :L]
        y = (lambda x, *d: x.permute(*d))(y, 0, 2, 1) + u * Dskip[None, None, :]
        return y

    def _B_ref(x, w1, w2):
        h = torch.einsum("bsd,df->bsf", x, w1)
        zero = torch.zeros_like(h)
        h = torch.maximum(h, zero)
        return torch.einsum("bsf,fd->bsd", h, w2)

    x = A_u
    xn = _layernorm(x, axis=-1)
    return x + _A_ref(xn, A_A_re, A_A_im, A_B_re, A_B_im, A_C_re, A_C_im, A_log_dt, A_Dskip) + _B_ref(xn, B_w1, B_w2)
```

```python
import re

TRANS = ("v_exp_f32","v_log_f32","v_rcp_f32","v_rsq_f32","v_sqrt_f32","v_sin_f32","v_cos_f32","v_rcp_iflag_f32")

def regs_of(op):
    op = op.strip()
    op = re.sub(r"^-", "", op)
    m = re.match(r"^abs\((.*)\)$", op)
    if m: op = m.group(1)
    m = re.match(r"^\|(.*)\|$", op)
    if m: op = m.group(1)
    m = re.match(r"^([vas])\[(\d+):(\d+)\]$", op)
    if m:
        return {f"{m.group(1)}{i}" for i in range(int(m.group(2)), int(m.group(3))+1)}
    m = re.match(r"^([vas])(\d+)$", op)
    if m: return {op}
    if op in ("vcc","vcc_lo","vcc_hi"): return {"vcc"}
    if op in ("exec","exec_lo","exec_hi"): return {"exec"}
    if op == "m0": return {"m0"}
    return set()

class Ins:
    def __init__(self, text):
        self.text = text
        t = text.split(";")[0].strip()
        self.raw = t
        self.label = t.endswith(":")
        self.directive = t.startswith(".")
        self.mn = t.split()[0] if t else ""
        rest = t[len(self.mn):].strip()
        ops, depth, cur = [], 0, ""
        for ch in rest:
            if ch in "[(": depth += 1
            if ch in "])": depth -= 1
            if ch == "," and depth == 0:
                ops.append(cur.strip()); cur = ""
            else: cur += ch
        if cur.strip(): ops.append(cur.strip())
        self.mods = ""
        if ops:
            parts = ops[-1].split()
            ops[-1] = parts[0]
            self.mods = " ".join(parts[1:])
        self.ops = ops
        self.classify()
    def classify(self):
        mn, ops = self.mn, self.ops
        self.kind = "other"; self.dst = set(); self.src = set()
        R = [regs_of(o) for o in ops]
        allr = set().union(*R) if R else set()
        if self.label or self.directive or not mn:
            self.kind = "meta"; return
        if mn.startswith("v_mfma"):
            self.kind = "mfma"; self.dst = R[0]; self.srcA = R[1]; self.srcB = R[2]; self.srcC = R[3]
            self.src = R[1] | R[2] | R[3]
            if "32x32x16" in mn: self.passes, self.xdl = 8, True
            elif "16x16x32" in mn: self.passes, self.xdl = 4, True
            elif "16x16x4_f32" in mn: self.passes, self.xdl = 8, False
            elif "32x32x2_f32" in mn: self.passes, self.xdl = 16, False
            else: raise ValueError("unknown mfma " + mn)
        elif mn.startswith("v_"):
            self.kind = "valu"
            base = re.sub(r"_(e32|e64|dpp|sdwa)$", "", mn)
            self.base = base
            self.trans = base in TRANS
            self.dpp = mn.endswith("_dpp") or "quad_perm" in self.mods or "row_" in self.mods
            if base.startswith("v_cmp"):
                self.dst = R[0]; self.src = set().union(*R[1:])
                if base.startswith("v_cmpx"): self.dst = self.dst | {"exec"}
            elif base in ("v_add_co_u32","v_sub_co_u32","v_subrev_co_u32","v_addc_co_u32","v_subb_co_u32","v_div_scale_f32","v_mad_u64_u32"):
                self.dst = R[0] | R[1]; self.src = set().union(*R[2:])
            elif base.startswith("v_permlane") and "swap" in base:
                self.dst = R[0] | R[1]; self.src = R[0] | R[1]
            elif base in ("v_fmac_f32","v_dot2c_f32_bf16","v_pk_fmac_f16","v_writelane_b32"):
                self.dst = R[0]; self.src = allr
            elif base == "v_nop":
                pass
            else:
                self.dst = R[0]; self.src = set().union(*R[1:]) if len(R) > 1 else set()
                if base == "v_cndmask_b32" and len(ops) == 3: self.src |= {"vcc"}
        elif mn.startswith("ds_"):
            self.kind = "ds"
            if mn.startswith("ds_read") or mn.startswith("ds_bpermute") or mn.startswith("ds_permute") or mn.startswith("ds_swizzle") or "_rtn" in mn:
                self.dst = R[0]; self.src = set().union(*R[1:])
            else:
                self.src = allr
        elif mn.startswith("buffer_") or mn.startswith("global_"):
            self.kind = "vmem"
            self.lds = " lds" in (" " + self.mods) or mn.startswith("global_load_lds")
            if mn in ("buffer_wbl2","buffer_inv"): pass
            elif "load" in mn and not self.lds:
                self.dst = R[0]; self.src = set().union(*R[1:])
            else:
                self.src = allr
                if self.lds: self.src = self.src | {"m0"}
                if "atomic" in mn and "sc0" in self.mods and mn.startswith("buffer"): self.dst = R[0]
                if "atomic" in mn and "sc0" in self.mods and mn.startswith("global"): self.dst = R[0]; self.src = set().union(*R[1:])
            self.widestore = ("store_dwordx4" in mn or "store_dwordx3" in mn)
            if self.widestore:
                self.sdata = R[0] if mn.startswith("buffer") else R[1]
        elif mn.startswith("s_"):
            self.kind = "salu"
            if mn.startswith(("s_cmp","s_cbranch","s_branch","s_waitcnt","s_barrier","s_nop","s_endpgm","s_sleep","s_setprio")):
                self.src = allr
            else:
                self.dst = R[0] if R else set(); self.src = set().union(*R[1:]) if len(R) > 1 else set()
                if "saveexec" in mn: self.dst = self.dst | {"exec"}
    def states(self):
        if self.kind == "meta": return 0
        if self.mn == "s_nop": return int(self.ops[0], 0) + 1
        return 1

def need(p, c):
    n = 0
    if p.kind == "valu":
        vd = {r for r in p.dst if r[0] in "va" and r != "vcc"}
        sd = {r for r in p.dst if r[0] == "s" or r == "vcc"}
        if c.kind == "mfma" and vd & c.src: n = max(n, 2)
        if c.kind == "valu":
            if p.trans and not c.trans and vd & c.src: n = max(n, 1)
            if p.trans and c.trans and vd & c.src: n = max(n, 1)
            if c.dpp and vd & c.src: n = max(n, 2)
            if c.base in ("v_readlane_b32","v_readfirstlane_b32") and vd & c.src: n = max(n, 1)
            if c.base.startswith("v_permlane") and vd & c.src: n = max(n, 2)
            if sd & c.src: n = max(n, 4 if c.base in ("v_readlane_b32","v_writelane_b32","v_div_fmas_f32") else 2)
            if ("sdwa" in p.mn or "op_sel" in p.mods) and not p.base.startswith("v_pk") and vd & (c.src | c.dst): n = max(n, 1)
            if "exec" in p.dst and c.dpp: n = max(n, 5)
            if "exec" in p.dst and c.base in ("v_readlane_b32","v_readfirstlane_b32","v_writelane_b32"): n = max(n, 4)
        if c.kind in ("ds","vmem") and p.trans and vd & c.src: n = max(n, 1)
        if c.kind == "vmem" and sd & c.src: n = max(n, 5)
        if c.kind == "salu" and sd & c.src: n = max(n, 1)
        if c.kind == "mfma" and "exec" in p.dst: n = max(n, 4)
    if p.kind == "mfma":
        tbl_x = {2:5,4:8,8:12,16:20}; tbl_s = {2:4,4:6,8:10,16:18}
        t = tbl_x if p.xdl else tbl_s
        if c.kind == "mfma":
            if p.dst & (c.srcA | c.srcB): n = max(n, t[p.passes])
            if p.dst & c.srcC and not (p.dst == c.srcC and p.passes == c.passes and p.xdl == c.xdl):
                n = max(n, {2:4,4:6,8:10,16:18}[p.passes])
            if p.dst & c.dst and not (p.dst & c.srcC):
                n = max(n, {2:4,4:6,8:10,16:18}[p.passes])
        elif c.kind in ("valu","ds","vmem"):
            if p.dst & (c.src | c.dst): n = max(n, t[p.passes])
            if c.kind == "valu" and p.xdl and p.srcC & c.dst: n = max(n, {2:1,4:3,8:7,16:15}[p.passes])
    if p.kind == "salu" and "m0" in p.dst and c.kind == "vmem" and getattr(c, "lds", False): n = max(n, 1)
    if p.kind == "vmem" and getattr(p, "widestore", False):
        if c.kind == "valu" and p.sdata & c.dst: n = max(n, 2)
        elif c.kind in ("ds","vmem","mfma") and p.sdata & c.dst: n = max(n, 2)
    return n

class Prog:
    def __init__(self):
        self.ins = []
        self.vm = []
        self.lg = []
        self.nops_added = 0
    def e(self, text):
        for line in text.strip().split("\n"):
            line = line.strip()
            if not line or line.startswith(";"):
                continue
            self._add(Ins(line))
    def _add(self, c):
        if c.kind != "meta":
            dist = 0; req = 0
            for p in reversed(self.ins[-40:]):
                if p.kind == "meta":
                    continue
                n = need(p, c)
                if n > dist: req = max(req, n - dist)
                dist += p.states()
                if dist >= 20: break
            while req > 0:
                k = min(req, 16)
                self.ins.append(Ins(f"s_nop {k-1}")); self.nops_added += 1
                req -= k
        self.ins.append(c)
    def vmem(self, text, tag=None):
        self.e(text); self.vm.append(tag)
    def wait_vm(self, tag, extra=""):
        idx = [i for i, t in enumerate(self.vm) if t == tag]
        if not idx:
            if extra: self.e(f"s_waitcnt {extra}")
            return
        last = idx[-1]
        n = len(self.vm) - 1 - last
        assert n <= 63, n
        self.e(f"s_waitcnt vmcnt({n}) {extra}")
        self.vm = self.vm[last+1:]
    def wait_vm_all(self):
        self.e("s_waitcnt vmcnt(0)"); self.vm = []
    def lds(self, text, tag=None):
        self.e(text); self.lg.append(tag)
    def wait_lg(self, tag):
        idx = [i for i, t in enumerate(self.lg) if t == tag]
        if not idx: return
        last = idx[-1]
        n = len(self.lg) - 1 - last
        n = min(n, 15)
        self.e(f"s_waitcnt lgkmcnt({n})")
        self.lg = self.lg[len(self.lg)-n:] if n else []
    def wait_lg_all(self):
        self.e("s_waitcnt lgkmcnt(0)"); self.lg = []
    def text(self):
        out = []
        for i in self.ins:
            if i.label or i.directive: out.append(i.text)
            else: out.append("    " + i.text)
        return "\n".join(out) + "\n"

def v(i, n=1): return f"v{i}" if n == 1 else f"v[{i}:{i+n-1}]"
def a(i, n=1): return f"a{i}" if n == 1 else f"a[{i}:{i+n-1}]"
def s(i, n=1): return f"s{i}" if n == 1 else f"s[{i}:{i+n-1}]"
import struct
def f32(x): return "0x%08x" % struct.unpack("<I", struct.pack("<f", x))[0]
```

```python
import sys, math
from asmlib import *

NAME = "parallel_sum__ssm_conv_s4__dense_activation_relu__prompt"
XNF, XNT, YT, HF, PART = 0x0, 0x240000, 0x480000, 0x6C0000, 0x18C0000
SZ_X = 2048*576*2
SZ_H = 2048*4608*2
SZ_P = 4*2048*576*4
LOG2E = 1.4426950408889634
INV2PI = 0.15915494309189535

def srd(p, d, lo, size, off=0):
    if off:
        p.e(f"s_add_u32 s{d}, s{lo}, {off:#x}")
        p.e(f"s_addc_u32 s{d+1}, s{lo+1}, 0")
    else:
        p.e(f"s_mov_b32 s{d}, s{lo}")
        p.e(f"s_mov_b32 s{d+1}, s{lo+1}")
    p.e(f"s_mov_b32 s{d+2}, {size:#x}")
    p.e(f"s_mov_b32 s{d+3}, 0x00020000")

def kernel_head(p, name):
    p.e(f".globl {name}")
    p.e(".p2align 8")
    p.e(f".type {name},@function")
    p.e(f"{name}:")
    p.vm = []; p.lg = []

def bf16r(p, dst, src):
    p.e(f"v_cvt_pk_bf16_f32 {dst}, {src}, {src}")
    p.e(f"v_lshlrev_b32 {dst}, 16, {dst}")

LN_PITCH = 1168
def ln_kernel(p):
    kernel_head(p, "ln_kernel")
    p.e("""
    s_cmp_ge_u32 s2, 64
    s_cbranch_scc1 L_ln_end
    s_load_dwordx2 s[4:5], s[0:1], 0
    s_load_dwordx2 s[6:7], s[0:1], 112
    v_lshrrev_b32 v1, 3, v0
    v_and_b32 v2, 7, v0
    s_lshl_b32 s3, s2, 5
    v_add_u32 v3, s3, v1
    v_mul_u32_u24 v3, 1152, v3
    v_lshl_add_u32 v3, v2, 4, v3
    s_waitcnt lgkmcnt(0)
    """)
    srd(p, 8, 4, SZ_X)
    srd(p, 12, 6, SZ_X, XNF)
    srd(p, 16, 6, SZ_X, XNT)
    X = 8; F = 48
    for i in range(9):
        p.vmem(f"buffer_load_dwordx4 {v(X+4*i,4)}, v3, s[8:11], 0 offen offset:{128*i}", i)
    p.e(f"v_mul_u32_u24 v4, {LN_PITCH}, v1")
    p.e("v_lshl_add_u32 v4, v2, 4, v4")
    p.e("v_mov_b32 v5, 0")
    p.e("v_mov_b32 v6, 0")
    for i in range(9):
        p.wait_vm(i)
        for j in range(4):
            r = X+4*i+j; f = F+8*i+2*j
            p.e(f"v_lshlrev_b32 v{f}, 16, v{r}")
            p.e(f"v_and_b32 v{f+1}, 0xffff0000, v{r}")
            p.e(f"v_add_f32 v5, v5, v{f}")
            p.e(f"v_add_f32 v6, v6, v{f+1}")
    def red8(r):
        p.e(f"v_add_f32_dpp v{r}, v{r}, v{r} quad_perm:[1,0,3,2] row_mask:0xf bank_mask:0xf")
        p.e(f"v_add_f32_dpp v{r}, v{r}, v{r} quad_perm:[2,3,0,1] row_mask:0xf bank_mask:0xf")
        p.e(f"v_add_f32_dpp v{r}, v{r}, v{r} row_half_mirror row_mask:0xf bank_mask:0xf")
    p.e("v_add_f32 v5, v5, v6")
    red8(5)
    p.e(f"v_mul_f32 v5, {f32(1.0/576)}, v5")
    bf16r(p, "v7", "v5")
    p.e("v_mov_b32 v6, 0")
    p.e("v_mov_b32 v44, 0")
    for k in range(0, 72, 2):
        p.e(f"v_sub_f32 v45, v{F+k}, v5")
        p.e(f"v_sub_f32 v46, v{F+k+1}, v5")
        p.e(f"v_fmac_f32 v6, v45, v45")
        p.e(f"v_fmac_f32 v44, v46, v46")
    p.e("v_add_f32 v6, v6, v44")
    red8(6)
    p.e(f"v_mul_f32 v6, {f32(1.0/576)}, v6")
    bf16r(p, "v6", "v6")
    p.e(f"v_add_f32 v6, {f32(1e-5)}, v6")
    bf16r(p, "v6", "v6")
    p.e("v_sqrt_f32 v6, v6")
    bf16r(p, "v6", "v6")
    p.e("v_rcp_f32 v44, v6")
    for k in range(0, 72, 2):
        r = X + k//2
        p.e(f"v_sub_f32 v{F+k}, v{F+k}, v7")
        p.e(f"v_sub_f32 v{F+k+1}, v{F+k+1}, v7")
        p.e(f"v_cvt_pk_bf16_f32 v{r}, v{F+k}, v{F+k+1}")
        p.e(f"v_lshlrev_b32 v{F+k}, 16, v{r}")
        p.e(f"v_and_b32 v{F+k+1}, 0xffff0000, v{r}")
        for q in (F+k, F+k+1):
            p.e(f"v_mul_f32 v45, v{q}, v44")
            p.e(f"v_fma_f32 v46, -v45, v6, v{q}")
            p.e(f"v_fma_f32 v{q}, v46, v44, v45")
        p.e(f"v_cvt_pk_bf16_f32 v{r}, v{F+k}, v{F+k+1}")
    for i in range(9):
        p.lds(f"ds_write_b128 v4, {v(X+4*i,4)} offset:{128*i}")
    p.wait_lg_all()
    p.e("s_barrier")
    p.e(f"""
    v_and_b32 v1, 63, v0
    v_lshrrev_b32 v2, 6, v0
    v_and_b32 v3, 31, v1
    v_mul_u32_u24 v3, {LN_PITCH}, v3
    v_lshrrev_b32 v4, 5, v1
    v_lshl_add_u32 v3, v4, 4, v3
    v_mul_u32_u24 v4, {9*32}, v2
    v_add_u32 v3, v3, v4
    s_mul_i32 s20, s2, {36*1024}
    v_mul_u32_u24 v5, {9*1024}, v2
    v_lshl_add_u32 v5, v1, 4, v5
    """)
    for i in range(9):
        p.lds(f"ds_read_b128 {v(X+4*i,4)}, v3 offset:{32*i}", i)
    p.e(f"""
    v_and_b32 v6, 15, v1
    v_lshrrev_b32 v7, 4, v1
    v_lshrrev_b32 v44, 2, v6
    v_lshl_add_u32 v44, v7, 3, v44
    v_mul_u32_u24 v44, {LN_PITCH}, v44
    v_and_b32 v45, 3, v6
    v_lshl_add_u32 v44, v45, 3, v44
    v_add_u32 v44, v44, v4
    v_mul_u32_u24 v45, {9*16}, v2
    v_add_u32 v45, v45, v6
    v_lshlrev_b32 v45, 12, v45
    v_lshl_add_u32 v45, v7, 4, v45
    s_lshl_b32 s21, s2, 6
    """)
    for i in range(9):
        p.wait_lg(i)
        p.e(f"s_add_u32 s22, s20, {1024*i}")
        p.vmem(f"buffer_store_dwordx4 {v(X+4*i,4)}, v5, s[12:15], s22 offen")
    for i in range(9):
        p.lds(f"ds_read_b64_tr_b16 {v(F+4*i,2)}, v44 offset:{32*i}", ("t",i))
        p.lds(f"ds_read_b64_tr_b16 {v(F+4*i+2,2)}, v44 offset:{32*i+4*LN_PITCH}", ("t",i))
        if i >= 4:
            j = i-4
            p.wait_lg(("t",j))
            p.e(f"s_add_u32 s22, s21, {16*4096*j}")
            p.vmem(f"buffer_store_dwordx4 {v(F+4*j,4)}, v45, s[16:19], s22 offen")
    for j in range(5, 9):
        p.wait_lg(("t",j))
        p.e(f"s_add_u32 s22, s21, {16*4096*j}")
        p.vmem(f"buffer_store_dwordx4 {v(F+4*j,4)}, v45, s[16:19], s22 offen")
    p.e("L_ln_end:")
    p.e("s_endpgm")
    return dict(name="ln_kernel", vgpr=120, agpr=0, sgpr=32, grid=64, block=256, lds=32*LN_PITCH)

PRM, TAB, CP, UB = 0, 2048, 2048+6144, 2048+6144+16640
WSZ = 29440
CPS = 4160
ZENT = 3070
def ssm_kernel(p):
    kernel_head(p, "ssm_kernel")
    p.e("""
    s_cmp_ge_u32 s2, 144
    s_cbranch_scc1 L_ssm_end
    s_load_dwordx16 s[36:51], s[0:1], 8
    s_load_dwordx2 s[6:7], s[0:1], 112
    v_lshrrev_b32 v1, 6, v0
    v_and_b32 v0, 63, v0
    v_readfirstlane_b32 s3, v1
    s_lshl_b32 s4, s2, 2
    s_add_u32 s4, s4, s3
    """)
    p.e(f"s_mul_i32 s5, s3, {WSZ}")
    p.e("s_waitcnt lgkmcnt(0)")
    p.e("""
    s_lshl_b32 s8, s4, 1
    s_and_b32 s8, s8, 0xfffffffc
    s_add_u32 s10, s48, s8
    s_addc_u32 s11, s49, 0
    s_load_dword s12, s[10:11], 0
    s_add_u32 s10, s50, s8
    s_addc_u32 s11, s51, 0
    s_load_dword s13, s[10:11], 0
    s_lshl_b32 s9, s4, 8
    v_lshlrev_b32 v2, 2, v0
    """)
    for k in range(6):
        srd(p, 16, 36+2*k, 576*128*2)
        p.vmem(f"buffer_load_dword v{8+k}, v2, s[16:19], s9 offen", "prm")
    srd(p, 20, 6, SZ_X, XNT)
    srd(p, 24, 6, SZ_X, YT)
    p.e("v_lshlrev_b32 v3, 4, v0")
    p.e("s_lshl_b32 s14, s4, 12")
    for i in range(4):
        p.e(f"s_add_u32 m0, s5, {UB+480+1024*i}")
        p.e(f"s_add_u32 s15, s14, {1024*i}")
        p.vmem(f"buffer_load_dwordx4 v3, s[20:23], s15 offen lds", "u")
    p.e(f"""
    v_mov_b32 v16, 0
    v_mov_b32 v17, 0
    v_mov_b32 v18, 0
    v_mov_b32 v19, 0
    v_min_u32 v4, 29, v0
    v_lshlrev_b32 v4, 4, v4
    v_add_u32 v4, s5, v4
    """)
    p.lds(f"ds_write_b128 v4, v[16:19] offset:{UB}")
    p.e(f"""
    v_bfe_u32 v4, v0, 2, 2
    v_mul_u32_u24 v4, {CPS}, v4
    v_and_b32 v5, 3, v0
    v_lshl_add_u32 v4, v5, 4, v4
    v_add_u32 v4, s5, v4
    """)
    p.lds(f"ds_write_b128 v4, v[16:19] offset:{CP+4096}")
    p.e("v_mov_b32 v4, s5")
    p.lds(f"ds_write_b32 v4, v16 offset:{TAB+2*ZENT}")
    p.e("""
    v_and_b32 v20, 15, v0
    v_lshrrev_b32 v21, 4, v0
    ; rho0
    v_and_b32 v4, 7, v20
    v_lshrrev_b32 v5, 3, v20
    v_lshl_add_u32 v4, v5, 7, v4
    v_cvt_f32_u32 v24, v4
    ; rho1
    v_and_b32 v4, 3, v20
    v_lshlrev_b32 v4, 1, v4
    v_bfe_u32 v5, v20, 2, 1
    v_lshl_add_u32 v4, v5, 7, v4
    v_add_u32 v4, 256, v4
    v_and_b32 v5, 1, v20
    v_lshlrev_b32 v5, 2, v5
    v_bfe_u32 v6, v20, 1, 2
    v_lshl_add_u32 v5, v6, 7, v5
    v_add_u32 v5, 512, v5
    v_cmp_gt_u32 vcc, 8, v20
    v_cndmask_b32 v4, v5, v4, vcc
    v_cvt_f32_u32 v25, v4
    ; rho2
    v_lshlrev_b32 v4, 7, v20
    v_add_u32 v4, 1024, v4
    v_cvt_f32_u32 v26, v4
    ; kappa
    v_lshlrev_b32 v4, 3, v20
    v_cvt_f32_u32 v27, v4
    """)
    p.e("s_waitcnt lgkmcnt(0)"); p.lg = []
    p.e(f"""
    s_and_b32 s8, s4, 1
    s_lshl_b32 s8, s8, 4
    s_lshr_b32 s12, s12, s8
    s_lshl_b32 s12, s12, 16
    s_lshr_b32 s13, s13, s8
    s_lshl_b32 s13, s13, 16
    v_mov_b32 v4, {f32(LOG2E)}
    v_mul_f32 v4, s12, v4
    v_exp_f32 v4, v4
    """)
    bf16r(p, "v4", "v4")
    p.wait_vm("prm")
    p.e("v_lshlrev_b32 v5, 5, v0")
    p.e("v_add_u32 v5, s5, v5")
    for hi in range(2):
        for k in range(6):
            if hi: p.e(f"v_and_b32 v{28+k}, 0xffff0000, v{8+k}")
            else:  p.e(f"v_lshlrev_b32 v{28+k}, 16, v{8+k}")
        o = 36+4*hi
        p.e(f"""
        v_mul_f32 v28, v4, v28
        v_mul_f32 v29, v4, v29
        v_mul_f32 v30, v4, v30
        v_mul_f32 v31, v4, v31
        v_mul_f32 v{o}, {f32(LOG2E)}, v28
        v_mul_f32 v{o+1}, {f32(INV2PI)}, v29
        v_mul_f32 v{o+2}, v32, v30
        v_fma_f32 v{o+2}, -v33, v31, v{o+2}
        v_mul_f32 v{o+3}, v32, v31
        v_fma_f32 v{o+3}, v33, v30, v{o+3}
        """)
        p.lds(f"ds_write_b128 v5, {v(o,4)} offset:{PRM+16*hi}")
    p.wait_lg_all()
    p.e("v_lshlrev_b32 v6, 4, v21")
    p.e("v_add_u32 v6, s5, v6")
    ACC = 48
    for i in range(12): p.e(f"v_mov_b32 v{ACC+i}, 0")
    PP = [60, 64]
    XY = [68, 76]
    T = 84
    def factors(pp, xy, mf):
        mf = list(mf)
        for t in range(4):
            rho = 24+t
            o = xy+2*t
            p.e(f"v_mul_f32 v{T}, v{pp}, v{rho}")
            p.e(f"v_mul_f32 v{T+1}, v{pp+1}, v{rho}")
            p.e(f"v_fract_f32 v{T+1}, v{T+1}")
            p.e(f"v_exp_f32 v{T}, v{T}")
            if mf: p.e(mf.pop(0))
            p.e(f"v_cos_f32 v{T+2}, v{T+1}")
            p.e(f"v_sin_f32 v{T+3}, v{T+1}")
            if mf and t < 2: p.e(mf.pop(0))
            if t < 3:
                p.e(f"v_mul_f32 v{o}, v{T}, v{T+2}")
                p.e(f"v_mul_f32 v{o+1}, v{T}, v{T+3}")
            else:
                p.e(f"v_mul_f32 v{T+2}, v{T}, v{T+2}")
                p.e(f"v_mul_f32 v{T+3}, v{T}, v{T+3}")
                p.e(f"v_mul_f32 v{o}, v{pp+2}, v{T+2}")
                p.e(f"v_fma_f32 v{o}, -v{pp+3}, v{T+3}, v{o}")
                p.e(f"v_mul_f32 v{o+1}, v{pp+2}, v{T+3}")
                p.e(f"v_fma_f32 v{o+1}, -v{pp+3}, v{T+2}, -v{o+1}")
        for m in mf: p.e(m)
    def mfmas(xy):
        out = []
        for t in range(3):
            out.append(f"v_mfma_f32_16x16x4_f32 {v(ACC+4*t,4)}, v{xy+2*t}, v{xy+6}, {v(ACC+4*t,4)}")
        for t in range(3):
            out.append(f"v_mfma_f32_16x16x4_f32 {v(ACC+4*t,4)}, v{xy+2*t+1}, v{xy+7}, {v(ACC+4*t,4)}")
        return out
    p.e(f"ds_read_b128 {v(PP[0],4)}, v6 offset:{PRM}")
    p.e(f"ds_read_b128 {v(PP[1],4)}, v6 offset:{PRM+64}")
    p.e("s_waitcnt lgkmcnt(1)")
    factors(PP[0], XY[0], [])
    p.e(f"ds_read_b128 {v(PP[0],4)}, v6 offset:{PRM+128}")
    p.e("s_mov_b32 s8, 0")
    p.e("L_ssm_kg:")
    p.e("s_waitcnt lgkmcnt(1)")
    factors(PP[1], XY[1], mfmas(XY[0]))
    p.e(f"ds_read_b128 {v(PP[1],4)}, v6 offset:{PRM+192}")
    p.e("s_waitcnt lgkmcnt(1)")
    factors(PP[0], XY[0], mfmas(XY[1]))
    p.e(f"ds_read_b128 {v(PP[0],4)}, v6 offset:{PRM+256}")
    p.e("v_add_u32 v6, 128, v6")
    p.e("s_add_u32 s8, s8, 1")
    p.e("s_cmp_lt_u32 s8, 16")
    p.e("s_cbranch_scc1 L_ssm_kg")
    p.e("s_nop 15")
    p.e(f"""
    v_cmp_eq_u32 vcc, 0, v0
    v_mov_b32 v4, s13
    v_cndmask_b32 v4, 0, v4, vcc
    v_add_f32 v{ACC}, v{ACC}, v4
    v_cvt_pk_bf16_f32 v60, v{ACC}, v{ACC+1}
    v_cvt_pk_bf16_f32 v61, v{ACC+2}, v{ACC+3}
    v_cvt_pk_bf16_f32 v62, v{ACC+4}, v{ACC+5}
    v_cvt_pk_bf16_f32 v63, v{ACC+6}, v{ACC+7}
    v_cvt_pk_bf16_f32 v64, v{ACC+8}, v{ACC+9}
    v_cvt_pk_bf16_f32 v65, v{ACC+10}, v{ACC+11}
    v_lshlrev_b32 v7, 4, v20
    v_add_u32 v7, s5, v7
    ; T0
    v_and_b32 v4, 1, v21
    v_lshlrev_b32 v4, 3, v4
    v_lshrrev_b32 v5, 1, v21
    v_lshl_add_u32 v4, v5, 8, v4
    v_add_u32 v4, v4, v7
    """)
    p.e("s_waitcnt lgkmcnt(0)")
    p.e(f"ds_write_b64 v4, v[60:61] offset:{TAB}")
    p.e(f"""
    v_lshlrev_b32 v4, 8, v21
    v_add_u32 v4, 512, v4
    v_lshlrev_b32 v5, 9, v21
    v_cmp_gt_u32 vcc, 2, v21
    v_cndmask_b32 v4, v5, v4, vcc
    v_add_u32 v4, v4, v7
    v_mov_b32 v8, 4
    v_cndmask_b32 v5, 8, v8, vcc
    v_add_u32 v5, v5, v4
    v_mov_b32 v9, 256
    v_mov_b32 v8, 8
    v_cndmask_b32 v6, v9, v8, vcc
    v_add_u32 v9, v6, v5
    v_add_u32 v6, v6, v4
    ds_write_b16 v4, v62 offset:{TAB}
    ds_write_b16_d16_hi v5, v62 offset:{TAB}
    ds_write_b16 v6, v63 offset:{TAB}
    ds_write_b16_d16_hi v9, v63 offset:{TAB}
    ; T2: byte = 2048 + 256*(4g+i)
    v_lshl_add_u32 v4, v21, 10, v7
    ds_write_b16 v4, v64 offset:{TAB+2048}
    ds_write_b16_d16_hi v4, v64 offset:{TAB+2048+256}
    ds_write_b16 v4, v65 offset:{TAB+2048+512}
    ds_write_b16_d16_hi v4, v65 offset:{TAB+2048+768}
    """)
    G = 28
    PK = 40
    p.e("v_lshlrev_b32 v7, 4, v0")
    p.e("v_add_u32 v7, s5, v7")
    p.e("v_lshlrev_b32 v8, 3, v0")
    p.e(f"v_mov_b32 v9, {2*ZENT}")
    p.e("s_waitcnt lgkmcnt(0)")
    for it in range(4):
        for k in range(11):
            c = 2047 - 512*it - k
            g = G+k
            p.e(f"v_sub_u32 v{g}, {c}, v8")
            if it == 3 and k >= 8:
                p.e(f"v_cmp_gt_i32 vcc, 0, v{g}")
            p.e(f"v_cvt_f32_i32 v{g}, v{g}")
            p.e(f"v_cvt_pk_bf16_f32 v{g}, v{g}, v{g}")
            p.e(f"v_lshlrev_b32 v{g}, 16, v{g}")
            p.e(f"v_cvt_i32_f32 v{g}, v{g}")
            p.e(f"v_lshlrev_b32 v{g}, 1, v{g}")
            if it == 3 and k >= 8:
                p.e(f"v_cndmask_b32 v{g}, v{g}, v9, vcc")
            p.e(f"v_add_u32 v{g}, s5, v{g}")
            p.e(f"ds_read_u16 v{g}, v{g} offset:{TAB}")
        p.e("s_waitcnt lgkmcnt(0)")
        for c in range(4):
            for j in range(4):
                i = c+2*j
                p.e(f"v_lshl_or_b32 v{PK+4*c+j}, v{G+i+1}, 16, v{G+i}")
            p.e(f"ds_write_b128 v7, {v(PK+4*c,4)} offset:{CP+CPS*c+1024*it}")
    p.e(f"""
    v_lshl_add_u32 v4, v21, 3, v20
    v_sub_u32 v4, 39, v4
    v_and_b32 v5, 3, v4
    v_mul_u32_u24 v5, {CPS}, v5
    v_lshrrev_b32 v4, 2, v4
    v_lshl_add_u32 v4, v4, 3, v5
    v_add_u32 v4, s5, v4
    v_lshlrev_b32 v5, 5, v20
    v_lshlrev_b32 v6, 4, v21
    v_sub_u32 v5, v5, v6
    v_add_u32 v5, 48, v5
    v_add_u32 v5, s5, v5
    """)
    p.wait_vm("u")
    p.e("s_waitcnt lgkmcnt(0)"); p.lg = []
    AF = [64, 128]; BF = [96, 160]; CA = 28
    def loads(s0, buf):
        out = []
        for k in range(8):
            oa = CP + 512*(7-k) + 64*(7-s0)
            out.append((f"ds_read_b64 {v(AF[buf]+4*k,2)}, v4 offset:{oa}", (s0,k)))
            out.append((f"ds_read_b64 {v(AF[buf]+4*k+2,2)}, v4 offset:{oa+8}", (s0,k)))
            ob = UB + 512*k + 64*(7-s0)
            out.append((f"ds_read_b128 {v(BF[buf]+4*k,4)}, v5 offset:{ob}", (s0,k)))
        return out
    for t, tag in loads(0, 0): p.lds(t, tag)
    p.wait_lg_all()
    for s0 in range(8):
        buf = s0 & 1
        nxt = loads(s0+1, buf ^ 1) if s0 < 7 else []
        cnt = 0
        for s1 in range(8):
            for dl in range(8-s1):
                jt = s1+dl
                cop = "0" if (s0 == 0 and s1 == 0) else v(CA+4*jt,4)
                p.e(f"v_mfma_f32_16x16x32_bf16 {v(CA+4*jt,4)}, {v(AF[buf]+4*s1,4)}, {v(BF[buf]+4*dl,4)}, {cop}")
                cnt += 1
                if nxt and cnt >= 2:
                    t, tag = nxt.pop(0); p.lds(t, tag)
        assert not nxt
        p.wait_lg_all()
    p.e("""
    v_lshlrev_b32 v4, 5, v20
    v_lshl_add_u32 v4, v21, 3, v4
    """)
    for jt in range(8):
        p.e(f"v_cvt_pk_bf16_f32 v{64+2*jt}, v{CA+4*jt}, v{CA+4*jt+1}")
        p.e(f"v_cvt_pk_bf16_f32 v{65+2*jt}, v{CA+4*jt+2}, v{CA+4*jt+3}")
        p.vmem(f"buffer_store_dwordx2 {v(64+2*jt,2)}, v4, s[24:27], s14 offen offset:{512*jt}")
    p.e("L_ssm_end:")
    p.e("s_endpgm")
    return dict(name="ssm_kernel", vgpr=192, agpr=0, sgpr=64, grid=144, block=256, lds=4*WSZ)

STG = 24576
def wg_decode(p):
    p.e("""
    v_lshrrev_b32 v1, 6, v0
    v_and_b32 v0, 63, v0
    v_readfirstlane_b32 s3, v1
    s_and_b32 s23, s2, 7
    s_lshr_b32 s24, s2, 3
    s_mul_i32 s25, s24, 43
    s_lshr_b32 s25, s25, 7
    s_mul_i32 s26, s25, 3
    s_sub_u32 s21, s24, s26
    s_and_b32 s26, s23, 1
    s_lshl_b32 s26, s26, 3
    s_add_u32 s20, s26, s25
    s_lshr_b32 s22, s23, 1
    """)

def gemm1_kernel(p):
    kernel_head(p, "gemm1_kernel")
    p.e("""
    s_cmp_ge_u32 s2, 192
    s_cbranch_scc1 L_g1_end
    s_load_dwordx2 s[4:5], s[0:1], 80
    s_load_dwordx2 s[6:7], s[0:1], 112
    """)
    wg_decode(p)
    p.e(f"""
    s_mul_i32 s27, s22, 3
    s_add_u32 s27, s27, s21
    s_lshl_b32 s28, s20, 2
    s_add_u32 s28, s28, s3
    v_lshrrev_b32 v2, 3, v0
    v_mul_u32_u24 v2, 9216, v2
    v_and_b32 v3, 7, v0
    v_bfe_u32 v4, v0, 4, 1
    v_lshlrev_b32 v4, 2, v4
    v_xor_b32 v3, v3, v4
    v_lshl_add_u32 v2, v3, 4, v2
    s_mul_i32 s29, s3, {48*9216}
    s_mul_i32 s30, s27, 768
    s_add_u32 s29, s29, s30
    v_add_u32 v2, s29, v2
    s_mul_i32 s31, s3, 6144
    v_lshlrev_b32 v3, 4, v0
    s_mul_i32 s32, s28, {36*1024}
    s_mul_i32 s33, s28, {288*1024}
    s_mul_i32 s34, s27, {24*1024}
    s_add_u32 s33, s33, s34
    v_and_b32 v4, 15, v0
    v_lshrrev_b32 v5, 2, v4
    v_lshlrev_b32 v5, 7, v5
    v_lshrrev_b32 v6, 5, v0
    v_lshl_add_u32 v5, v6, 10, v5
    v_bfe_u32 v6, v0, 4, 1
    v_lshl_add_u32 v5, v6, 5, v5
    v_and_b32 v6, 3, v4
    v_lshl_add_u32 v5, v6, 3, v5
    v_lshrrev_b32 v6, 3, v4
    v_lshlrev_b32 v6, 6, v6
    v_xor_b32 v8, v5, v6
    v_xor_b32 v9, 64, v8
    v_add_u32 v10, {2*STG}, v8
    v_add_u32 v11, {2*STG}, v9
    v_add_u32 v12, {4*STG}, v8
    v_add_u32 v13, {4*STG}, v9
    s_waitcnt lgkmcnt(0)
    """)
    srd(p, 8, 4, 576*4608*2)
    srd(p, 12, 6, SZ_X, XNF)
    srd(p, 16, 6, SZ_H, HF)
    def dma(st):
        ch, part = st//3, st%3
        out = []
        for i in range(6):
            out.append([f"s_add_u32 m0, s31, {(st%6)*STG + 1024*i}",
                        f"s_mov_b32 s35, {(192*part+8*i)*9216 + 128*ch}",
                        f"buffer_load_dwordx4 v2, s[8:11], s35 offen lds"])
        return out
    def issue_dma(g, st):
        p.e(g[0]); p.e(g[1]); p.vmem(g[2], ("w", st))
    def xload(ks):
        p.e(f"s_add_u32 s35, s32, {(ks//4)*4096}")
        p.vmem(f"buffer_load_dwordx4 {a(4*ks,4)}, v3, s[12:15], s35 offen offset:{(ks%4)*1024}", ("x", ks//12))
    for st in range(4):
        for g in dma(st): issue_dma(g, st)
        if st < 3:
            for ks in range(12*st, 12*st+12): xload(ks)
    NF = 6; PF = 4; FR = 16
    ACC = [40, 72]
    EP = 104
    seq = [(st, kk, tt) for st in range(18) for kk in range(12) for tt in range(2)]
    def fread(m):
        st, kk, tt = seq[m]
        slot = st % 6
        base = 8 + 2*(slot//2) + tt
        off = (slot%2)*STG + kk*2048
        r = FR + 4*(m % NF)
        p.lds(f"ds_read_b64_tr_b16 {v(r,2)}, v{base} offset:{off}", m)
        p.lds(f"ds_read_b64_tr_b16 {v(r+2,2)}, v{base} offset:{off+512}", m)
    p.wait_vm(("x", 0))
    p.e("s_barrier")
    pend = dma(4); pend_st = 4
    for m in range(PF): fread(m)
    epi = []
    for m, (st, kk, tt) in enumerate(seq):
        ch = st//3
        loc = m % 24
        if loc == 24-PF-1 and st < 17:
            p.wait_vm(("w", st+1))
            if st+1 < 3: p.wait_vm(("x", st+1))
            p.e("s_barrier")
            assert not pend
            if st+5 < 18: pend = dma(st+5); pend_st = st+5
        p.wait_lg(m)
        acc = ACC[ch&1] + 16*tt
        ks = 12*(st%3) + kk
        cop = "0" if ks == 0 else v(acc,16)
        p.e(f"v_mfma_f32_32x32x16_bf16 {v(acc,16)}, {v(FR+4*(m%NF),4)}, {a(4*ks,4)}, {cop}")
        if m+PF < len(seq): fread(m+PF)
        if pend and (m % 2 == 1):
            issue_dma(pend.pop(0), pend_st)
        if m % 72 == 2 and ch > 0:
            epi = epilogue1(ch-1, ACC, EP)
        for _ in range(2):
            if epi:
                t = epi.pop(0)
                if t.startswith("buffer"): p.vmem(t, "st")
                else: p.e(t)
    assert not epi
    for t in epilogue1(5, ACC, EP):
        if t.startswith("buffer"): p.vmem(t, "st")
        else: p.e(t)
    p.e("L_g1_end:")
    p.e("s_endpgm")
    return dict(name="gemm1_kernel", vgpr=120, agpr=144, sgpr=40, grid=192, block=256, lds=6*STG)

def epilogue1(ch, ACC, EP):
    out = [f"s_add_u32 s36, s33, {4096*ch}"]
    for q in range(4):
        src = ACC[ch&1] + 8*q
        for j in range(4):
            out.append(f"v_cvt_pk_bf16_f32 v{EP+4*q+j}, v{src+2*j}, v{src+2*j+1}")
        for j in range(4):
            out.append(f"v_pk_max_i16 v{EP+4*q+j}, v{EP+4*q+j}, 0")
        out.append(f"buffer_store_dwordx4 {v(EP+4*q,4)}, v3, s[16:19], s36 offen offset:{1024*q}")
    return out

def gemm2_kernel(p):
    kernel_head(p, "gemm2_kernel")
    p.e("""
    s_cmp_ge_u32 s2, 192
    s_cbranch_scc1 L_g2_end
    s_load_dwordx2 s[4:5], s[0:1], 88
    s_load_dwordx2 s[6:7], s[0:1], 112
    """)
    wg_decode(p)
    p.e(f"""
    s_lshl_b32 s28, s20, 2
    s_add_u32 s28, s28, s3
    v_lshrrev_b32 v2, 3, v0
    v_mul_u32_u24 v2, 1152, v2
    v_and_b32 v3, 7, v0
    v_bfe_u32 v4, v0, 4, 1
    v_lshlrev_b32 v4, 2, v4
    v_xor_b32 v3, v3, v4
    v_lshl_add_u32 v2, v3, 4, v2
    s_mul_i32 s29, s22, {1152*1152}
    s_mul_i32 s30, s3, {16*1152}
    s_add_u32 s29, s29, s30
    s_mul_i32 s30, s21, 384
    s_add_u32 s29, s29, s30
    v_add_u32 v2, s29, v2
    s_mul_i32 s31, s3, 6144
    v_lshlrev_b32 v3, 4, v0
    s_mul_i32 s32, s28, {288*1024}
    s_mul_i32 s34, s22, {72*1024}
    s_add_u32 s32, s32, s34
    s_lshl_b32 s33, s22, 6
    s_add_u32 s33, s33, s28
    s_mul_i32 s33, s33, 18
    s_mul_i32 s34, s21, 6
    s_add_u32 s33, s33, s34
    s_lshl_b32 s33, s33, 12
    v_and_b32 v4, 15, v0
    v_lshrrev_b32 v5, 2, v4
    v_lshlrev_b32 v5, 7, v5
    v_lshrrev_b32 v6, 5, v0
    v_lshl_add_u32 v5, v6, 9, v5
    v_bfe_u32 v6, v0, 4, 1
    v_lshl_add_u32 v5, v6, 5, v5
    v_and_b32 v6, 3, v4
    v_lshl_add_u32 v5, v6, 3, v5
    v_lshrrev_b32 v6, 3, v4
    v_lshlrev_b32 v6, 6, v6
    v_xor_b32 v8, v5, v6
    v_xor_b32 v9, 64, v8
    v_add_u32 v10, {2*STG}, v8
    v_add_u32 v11, {2*STG}, v9
    v_add_u32 v12, {4*STG}, v8
    v_add_u32 v13, {4*STG}, v9
    s_waitcnt lgkmcnt(0)
    """)
    srd(p, 8, 4, 576*4608*2)
    srd(p, 12, 6, SZ_H, HF)
    srd(p, 16, 6, SZ_P, PART)
    NB = 24
    def dma(st):
        out = []
        for i in range(6):
            rbl, cb = i//3, i%3
            out.append([f"s_add_u32 m0, s31, {(st%6)*STG + 1024*i}",
                        f"s_mov_b32 s35, {(64*st+8*rbl)*1152 + 128*cb}",
                        f"buffer_load_dwordx4 v2, s[8:11], s35 offen lds"])
        for kk in range(4):
            ks = 4*st+kk
            out.append(["", f"s_add_u32 s35, s32, {st*4096}",
                        f"buffer_load_dwordx4 {a(4*(ks%NB),4)}, v3, s[12:15], s35 offen offset:{kk*1024}"])
        return out
    def issue_dma(g, st):
        if g[0]: p.e(g[0])
        p.e(g[1]); p.vmem(g[2], ("w", st))
    for st in range(5):
        for g in dma(st): issue_dma(g, st)
    NF = 6; PF = 4; FR = 16
    ACC = 40
    seq = [(st, kk, tt) for st in range(18) for kk in range(4) for tt in range(6)]
    def fread(m):
        st, kk, tt = seq[m]
        slot = st % 6
        base = 8 + 2*(slot//2) + (tt&1)
        off = (slot%2)*STG + ((2*kk)*3 + (tt>>1))*1024
        r = FR + 4*(m % NF)
        p.lds(f"ds_read_b64_tr_b16 {v(r,2)}, v{base} offset:{off}", m)
        p.lds(f"ds_read_b64_tr_b16 {v(r+2,2)}, v{base} offset:{off+3072}", m)
    p.wait_vm(("w", 0))
    p.e("s_barrier")
    pend = []
    for m in range(PF): fread(m)
    for m, (st, kk, tt) in enumerate(seq):
        loc = m % 24
        if loc == 24-PF-1 and st < 17:
            p.wait_vm(("w", st+1))
            p.e("s_barrier")
            assert not pend
            if st+5 < 18: pend = dma(st+5); pend_st = st+5
        p.wait_lg(m)
        acc = ACC + 16*tt
        ks = 4*st + kk
        cop = "0" if ks == 0 else v(acc,16)
        p.e(f"v_mfma_f32_32x32x16_bf16 {v(acc,16)}, {v(FR+4*(m%NF),4)}, {a(4*(ks%NB),4)}, {cop}")
        if m+PF < len(seq): fread(m+PF)
        if pend and (m % 2 == 1):
            issue_dma(pend.pop(0), pend_st)
    for tt in range(6):
        p.e(f"s_add_u32 s36, s33, {4096*tt}")
        for i in range(4):
            p.vmem(f"buffer_store_dwordx4 {v(ACC+16*tt+4*i,4)}, v3, s[16:19], s36 offen offset:{1024*i}")
    p.e("L_g2_end:")
    p.e("s_endpgm")
    return dict(name="gemm2_kernel", vgpr=136, agpr=96, sgpr=40, grid=192, block=256, lds=6*STG)

def final_kernel(p):
    kernel_head(p, "final_kernel")
    p.e("""
    s_cmp_ge_u32 s2, 288
    s_cbranch_scc1 L_fin_end
    s_load_dwordx2 s[4:5], s[0:1], 0
    s_load_dwordx2 s[6:7], s[0:1], 112
    s_load_dwordx2 s[24:25], s[0:1], 96
    v_lshrrev_b32 v1, 6, v0
    v_and_b32 v0, 63, v0
    v_readfirstlane_b32 s3, v1
    s_lshl_b32 s26, s2, 2
    s_add_u32 s26, s26, s3
    s_mul_i32 s27, s26, 3641
    s_lshr_b32 s27, s27, 16         ; ttile
    s_mul_i32 s28, s27, 18
    s_sub_u32 s28, s26, s28         ; dtile
    s_lshl_b32 s29, s26, 12
    v_lshlrev_b32 v2, 4, v0
    v_and_b32 v4, 31, v0
    v_lshrrev_b32 v5, 5, v0
    v_mul_u32_u24 v3, 1152, v4
    v_lshl_add_u32 v3, v5, 3, v3
    s_mul_i32 s30, s27, 36864
    s_lshl_b32 s31, s28, 6
    s_add_u32 s30, s30, s31
    v_lshlrev_b32 v6, 14, v5
    v_lshl_add_u32 v6, v4, 1, v6
    s_lshl_b32 s31, s28, 17
    s_lshl_b32 s32, s27, 6
    s_add_u32 s31, s31, s32
    s_waitcnt lgkmcnt(0)
    """)
    srd(p, 8, 4, SZ_X)
    srd(p, 12, 6, SZ_P, PART)
    srd(p, 16, 6, SZ_X, YT)
    srd(p, 20, 24, SZ_X)
    P = 8; X = 72; Y = 80
    for kq in range(4):
        p.e(f"s_add_u32 s33, s29, {kq*64*18*4096}")
        for i in range(4):
            p.vmem(f"buffer_load_dwordx4 {v(P+16*kq+4*i,4)}, v2, s[12:15], s33 offen offset:{1024*i}")
    for i in range(4):
        p.vmem(f"buffer_load_dwordx2 {v(X+2*i,2)}, v3, s[8:11], s30 offen offset:{16*i}")
    for i in range(4):
        for j in range(4):
            p.e(f"s_add_u32 s33, s31, {(8*i+j)*4096}")
            p.vmem(f"buffer_load_ushort v{Y+4*i+j}, v6, s[16:19], s33 offen")
    p.wait_vm_all()
    for r in range(16):
        p.e(f"v_add_f32 v{P+r}, v{P+r}, v{P+16+r}")
        p.e(f"v_add_f32 v{P+32+r}, v{P+32+r}, v{P+48+r}")
        p.e(f"v_add_f32 v{P+r}, v{P+r}, v{P+32+r}")
    for r in range(0, 16, 2):
        xr = X + r//2
        p.e(f"""
        v_cvt_pk_bf16_f32 v{P+r}, v{P+r}, v{P+r+1}
        v_and_b32 v{P+r+1}, 0xffff0000, v{P+r}
        v_lshlrev_b32 v{P+r}, 16, v{P+r}
        v_lshlrev_b32 v{Y+r}, 16, v{Y+r}
        v_lshlrev_b32 v{Y+r+1}, 16, v{Y+r+1}
        v_lshlrev_b32 v4, 16, v{xr}
        v_and_b32 v5, 0xffff0000, v{xr}
        v_add_f32 v4, v4, v{Y+r}
        v_add_f32 v5, v5, v{Y+r+1}
        v_cvt_pk_bf16_f32 v4, v4, v5
        v_and_b32 v5, 0xffff0000, v4
        v_lshlrev_b32 v4, 16, v4
        v_add_f32 v4, v4, v{P+r}
        v_add_f32 v5, v5, v{P+r+1}
        v_cvt_pk_bf16_f32 v{xr}, v4, v5
        """)
    for i in range(4):
        p.vmem(f"buffer_store_dwordx2 {v(X+2*i,2)}, v3, s[20:23], s30 offen offset:{16*i}")
    p.e("L_fin_end:")
    p.e("s_endpgm")
    return dict(name="final_kernel", vgpr=96, agpr=0, sgpr=40, grid=288, block=256, lds=0)

def build(kernels, order, path):
    p = Prog()
    infos = {}
    for k in kernels:
        i = k(p); infos[i["name"]] = i
    ref = open(f"cdna_kernels/{NAME}.s.ref").read().split("\n")
    head = [l for l in ref if l.startswith(";") and "@launch" not in l and "Override launch" not in l and "grid=ceil" not in l]
    out = "\n".join(head) + "\n"
    for n in order:
        i = infos[n]
        out += f"; @launch kernel={n} grid=({i['grid']},1,1) block=({i['block']},1,1) lds={i['lds']}\n"
    out += '.amdgcn_target "amdgcn-amd-amdhsa--gfx950"\n.text\n'
    out += p.text()
    out += '.section .rodata,"a"\n'
    for i in infos.values():
        acc = (i["vgpr"]+3)//4*4
        nfv = acc + i["agpr"] if i["agpr"] else i["vgpr"]
        out += f""".p2align 6
.amdhsa_kernel {i['name']}
  .amdhsa_next_free_vgpr {nfv}
  .amdhsa_next_free_sgpr {i['sgpr']}
  .amdhsa_accum_offset {acc}
  .amdhsa_group_segment_fixed_size 0
  .amdhsa_kernarg_size 120
  .amdhsa_user_sgpr_count 2
  .amdhsa_user_sgpr_kernarg_segment_ptr 1
  .amdhsa_system_sgpr_workgroup_id_x 1
.end_amdhsa_kernel
"""
    open(path, "w").write(out)
    print("wrote", path, len(out), "bytes; nops added", p.nops_added)

if __name__ == "__main__":
    path = sys.argv[1] if len(sys.argv) > 1 else f"cdna_kernels/{NAME}.s"
    build([ln_kernel, ssm_kernel, gemm1_kernel, gemm2_kernel, final_kernel],
          ["ln_kernel", "ssm_kernel", "gemm1_kernel", "gemm2_kernel", "final_kernel"], path)
```

```python
import sys, math
from asmlib import *

NAME = "parallel_sum__ssm_conv_s4__dense_activation_relu__prompt"
KNAME = NAME + "_kernel"
XNF, YT, HF, PX, MB = 0x0, 0x240000, 0x480000, 0x1680000, 0x1F80000
WSSZ = 0x2000000
DBGOFF = 0x3000000
SZ_X = 2048*576*2
SZ_W = 576*4608*2
LOG2E = 1.4426950408889634
INV2PI = 0.15915494309189535
STAMP = False
STG = 24576
YLDS = 6*STG
LDS_BYTES = 6*STG + 4*3072
P_X, P_ARE, P_LOGDT, P_D, P_W1, P_W2, P_OUT, P_DBG, P_WS = 36, 38, 50, 52, 56, 58, 60, 62, 64
R_W1, R_W2, R_WS, R_X, R_OUT, R_DBG = 8, 12, 16, 20, 24, 28
VST = 255
SST = 100

def srd(p, d, lo, size, off=0):
    if off > 0:
        p.e(f"s_add_u32 s{d}, s{lo}, {off:#x}")
        p.e(f"s_addc_u32 s{d+1}, s{lo+1}, 0")
    elif off < 0:
        p.e(f"s_sub_u32 s{d}, s{lo}, {-off:#x}")
        p.e(f"s_subb_u32 s{d+1}, s{lo+1}, 0")
    else:
        p.e(f"s_mov_b32 s{d}, s{lo}")
        p.e(f"s_mov_b32 s{d+1}, s{lo+1}")
    p.e(f"s_mov_b32 s{d+2}, {size:#x}")
    p.e(f"s_mov_b32 s{d+3}, 0x00020000")

class St:
    n = 0
def stamp_begin(p):
    if not STAMP: return
    p.e(f"v_mov_b32 v{VST}, -1")
    p.e(f"s_memrealtime s[{SST}:{SST+1}]")
    p.e("s_waitcnt lgkmcnt(0)")
    p.e(f"v_writelane_b32 v{VST}, s{SST}, 0")
    p.e(f"s_memtime s[{SST}:{SST+1}]")
def stamp(p):
    if not STAMP: return
    St.n += 1
    assert St.n < 62
    p.e(f"v_writelane_b32 v{VST}, s{SST}, {St.n}")
    p.e(f"s_memtime s[{SST}:{SST+1}]")
def stamp_end(p):
    if not STAMP: return
    p.e("s_waitcnt vmcnt(0) lgkmcnt(0)")
    stamp(p)
    p.e("s_waitcnt lgkmcnt(0)")
    St.n += 1
    p.e(f"v_writelane_b32 v{VST}, s{SST}, {St.n}")
    p.e(f"s_memrealtime s[{SST}:{SST+1}]")
    p.e("s_waitcnt lgkmcnt(0)")
    St.n += 1
    p.e(f"v_writelane_b32 v{VST}, s{SST}, {St.n}")
    srd(p, 8, P_WS, 0x1000000, DBGOFF)
    p.e("s_lshl_b32 s35, s2, 2")
    p.e("s_add_u32 s35, s35, s3")
    p.e("s_lshl_b32 s35, s35, 8")
    p.e("v_lshlrev_b32 v2, 2, v0")
    p.e(f"buffer_store_dword v{VST}, v2, s[8:11], s35 offen")

def bf16r(p, dst, src):
    p.e(f"v_cvt_pk_bf16_f32 {dst}, {src}, {src}")
    p.e(f"v_lshlrev_b32 {dst}, 16, {dst}")

_lab = [0]
def newlabel(s):
    _lab[0] += 1
    return f"L_{s}_{_lab[0]}"

def spin_until(p, load, check, first_tag=None, sleep=2):
    ok = newlabel("ok"); lp = newlabel("spin")
    if first_tag is not None:
        p.wait_vm(first_tag)
        for c in check: p.e(c)
        p.e(f"s_cbranch_vccz {ok}")
    p.e("s_mov_b32 s98, 0")
    p.e(f"{lp}:")
    p.e("s_add_u32 s98, s98, 1")
    p.e("s_cmp_gt_u32 s98, 0x40000")
    p.e(f"s_cbranch_scc1 {ok}")
    if first_tag is not None: p.e(f"s_sleep {sleep}")
    p.e(load)
    p.e("s_waitcnt vmcnt(0)")
    for c in check: p.e(c)
    if first_tag is None:
        p.e(f"s_cbranch_vccz {ok}")
        p.e(f"s_sleep {sleep}")
        p.e(f"s_branch {lp}")
        p.vm = []
    else:
        p.e(f"s_cbranch_vccnz {lp}")
    p.e(f"{ok}:")
    p.e("s_nop 0")

def mlp_role(p):
    St.n = 0
    stamp_begin(p)
    p.e(f"""
    s_mul_i32 s88, s24, 43
    s_lshr_b32 s88, s88, 7
    s_mul_i32 s89, s88, 3
    s_sub_u32 s67, s24, s89
    s_and_b32 s89, s23, 1
    s_lshl_b32 s89, s89, 3
    s_add_u32 s66, s89, s88
    s_lshr_b32 s68, s23, 1
    s_lshl_b32 s69, s66, 2
    s_add_u32 s69, s69, s3
    s_lshl_b32 s70, s24, 2
    s_add_u32 s70, s70, s3
    s_mul_i32 s71, s68, 3
    s_add_u32 s71, s71, s67         ; ft
    v_lshlrev_b32 v1, 4, v0
    v_lshrrev_b32 v20, 3, v0
    v_and_b32 v21, 7, v0
    v_bfe_u32 v22, v0, 4, 1
    v_lshlrev_b32 v22, 2, v22
    v_xor_b32 v21, v21, v22
    v_lshlrev_b32 v21, 4, v21
    ; W1 voffsets
    v_mul_u32_u24 v2, 9216, v20
    v_add_u32 v2, v2, v21
    s_mul_i32 s88, s3, {48*9216}
    s_mul_i32 s89, s71, 768
    s_add_u32 s88, s88, s89
    v_add_u32 v2, s88, v2
    v_add_u32 v3, {8*9216-1024}, v2
    v_add_u32 v4, {16*9216-2048}, v2
    v_mul_u32_u24 v5, 1152, v20
    v_add_u32 v5, v5, v21
    s_mul_i32 s88, s3, {16*1152}
    s_mul_i32 s89, s67, 384
    s_add_u32 s88, s88, s89
    s_add_u32 s88, s88, 4096
    v_add_u32 v5, s88, v5
    v_subrev_u32 v6, {1024-128}, v5
    v_subrev_u32 v7, {2048-256}, v5
    s_mul_i32 s72, s3, 6144
    v_and_b32 v20, 15, v0
    v_lshrrev_b32 v21, 2, v20
    v_lshlrev_b32 v21, 7, v21
    v_bfe_u32 v22, v0, 4, 1
    v_lshl_add_u32 v21, v22, 5, v21
    v_and_b32 v22, 3, v20
    v_lshl_add_u32 v21, v22, 3, v21
    v_lshrrev_b32 v22, 3, v20
    v_lshlrev_b32 v22, 6, v22
    v_xor_b32 v21, v21, v22
    v_lshrrev_b32 v22, 5, v0
    v_lshl_add_u32 v8, v22, 10, v21
    v_lshl_add_u32 v14, v22, 9, v21
    v_xor_b32 v9, 64, v8
    v_xor_b32 v15, 64, v14
    v_add_u32 v10, {2*STG}, v8
    v_add_u32 v11, {2*STG}, v9
    v_add_u32 v12, {4*STG}, v8
    v_add_u32 v13, {4*STG}, v9
    v_add_u32 v16, {2*STG}, v14
    v_add_u32 v17, {2*STG}, v15
    v_add_u32 v18, {4*STG}, v14
    v_add_u32 v19, {4*STG}, v15
    v_mov_b32 v240, 0
    s_mul_i32 s73, s69, {36*1024}
    s_mul_i32 s74, s69, {288*1024}
    s_mul_i32 s88, s68, {72*1024}
    s_add_u32 s74, s74, s88
    s_add_u32 s74, s74, {HF}
    s_add_u32 s88, s67, 1
    s_cmp_eq_u32 s88, 3
    s_cselect_b32 s88, 0, s88                   ; P1
    s_add_u32 s89, s88, 1
    s_cmp_eq_u32 s89, 3
    s_cselect_b32 s89, 0, s89                   ; P2
    s_mul_i32 s75, s67, {24*1024}
    s_add_u32 s75, s75, s74
    s_mul_i32 s76, s88, {24*1024}
    s_add_u32 s76, s76, s74                     ; P1 h base
    s_mul_i32 s77, s89, {24*1024}
    s_add_u32 s77, s77, s74                     ; P2 h base
    s_mul_i32 s90, s68, {1152*1152}
    s_mul_i32 s78, s67, {384*1152}
    s_add_u32 s78, s78, s90
    s_mul_i32 s79, s88, {384*1152}
    s_add_u32 s79, s79, s90
    s_mul_i32 s80, s89, {384*1152}
    s_add_u32 s80, s80, s90
    s_lshl_b32 s81, s69, 10
    s_add_u32 s81, s81, {MB}
    s_lshl_b32 s88, s68, 7
    s_add_u32 s82, s81, s88
    s_lshl_b32 s88, s67, 2
    s_add_u32 s83, s82, s88
    s_lshl_b32 s88, s67, 7
    s_add_u32 s84, s81, s88
    s_add_u32 s84, s84, 512
    s_lshl_b32 s88, s68, 2
    s_add_u32 s85, s84, s88
    s_mul_i32 s86, s69, 3
    s_add_u32 s86, s86, s67
    s_mul_i32 s86, s86, {16*3072}
    s_add_u32 s86, s86, {PX}
    s_waitcnt lgkmcnt(0)
    """)
    srd(p, R_W1, P_W1, SZ_W)
    srd(p, R_W2, P_W2, SZ_W+4096, -4096)
    srd(p, R_WS, P_WS, WSSZ)
    srd(p, R_X, P_X, SZ_X)
    srd(p, R_OUT, P_OUT, SZ_X)
    srd(p, R_DBG, P_DBG, 256)

    g2 = [(0,s) for s in range(6)] + [(1,s) for s in range(3)] + [(2,s) for s in range(3)] + [(1,s) for s in range(3,6)] + [(2,s) for s in range(3,6)]
    def dma(st):
        slot = (st % 6)*STG
        out = []
        for half in range(2):
            out.append(f"s_add_u32 m0, s72, {slot + 3072*half}")
            if st < 18:
                ch, part = st//3, st%3
                out.append(f"s_mov_b32 s35, {(192*part+24*half)*9216 + 128*ch}")
                for i in range(3):
                    out.append(f"buffer_load_dwordx4 v{2+i}, s[{R_W1}:{R_W1+3}], s35 offen offset:{1024*i} lds")
            else:
                rel, sub = g2[st-18]
                out.append(f"s_add_u32 s35, s{78+rel}, {(64*sub+8*half)*1152}")
                for i in range(3):
                    out.append(f"buffer_load_dwordx4 v{5+i}, s[{R_W2}:{R_W2+3}], s35 offen offset:{1024*i} lds")
        return [(t, ("w", st)) for t in out]
    def emit(t, tag):
        if t.startswith("buffer"): p.vmem(t, tag)
        else: p.e(t)
    for st in range(5):
        for t, tag in dma(st): emit(t, tag)
    p.e(f"""
    v_and_b32 v20, 31, v0
    v_lshrrev_b32 v21, 5, v0
    v_mul_u32_u24 v241, 1152, v20
    v_lshl_add_u32 v242, v21, 4, v241
    v_lshl_add_u32 v241, v21, 3, v241
    s_mul_i32 s87, s69, 36864
    s_mul_i32 s88, s67, 384
    s_add_u32 s87, s87, s88
    s_mul_i32 s88, s68, 96
    s_add_u32 s87, s87, s88
    """)
    for j in range(6):
        p.vmem(f"buffer_load_dwordx2 {a(240+2*j,2)}, v241, s[{R_X}:{R_X+3}], s87 offen offset:{16*j}", "xr")
    p.e(f"""
    v_min_u32 v20, 53, v0
    v_mul_u32_u24 v21, 57, v20
    v_lshrrev_b32 v21, 10, v21                  ; l/18
    v_mul_u32_u24 v22, 18, v21
    v_sub_u32 v22, v20, v22
    v_mul_u32_u24 v21, 9216, v21
    v_lshl_add_u32 v21, v22, 7, v21
    s_mul_i32 s88, s70, {6*9216}
    s_mul_i32 s89, s68, 2304
    s_add_u32 s88, s88, s89
    s_add_u32 s89, s88, {3*9216}
    v_lshlrev_b32 v22, 7, v20
    s_mul_i32 s32, s70, {108*128}
    s_add_u32 s32, s32, s90
    s_add_u32 s32, s32, 4096
    s_add_u32 s33, s32, {54*128}
    """)
    p.vmem(f"buffer_load_dword v244, v21, s[{R_W1}:{R_W1+3}], s88 offen", "touch")
    p.vmem(f"buffer_load_dword v245, v21, s[{R_W1}:{R_W1+3}], s89 offen", "touch")
    p.vmem(f"buffer_load_dword v246, v22, s[{R_W2}:{R_W2+3}], s32 offen", "touch")
    p.vmem(f"buffer_load_dword v247, v22, s[{R_W2}:{R_W2+3}], s33 offen", "touch")
    stamp(p)
    p.e("s_lshl_b32 s88, s69, 2")
    spin_until(p, f"buffer_load_dword v20, v240, s[{R_DBG}:{R_DBG+3}], s88 offen sc1",
               ["v_cmp_eq_u32 vcc, 0, v20"], None, sleep=8)
    stamp(p)
    for ks in range(36):
        if ks % 4 == 0: p.e(f"s_add_u32 s35, s73, {(ks//4)*4096}")
        p.vmem(f"buffer_load_dwordx4 {a(4*ks,4)}, v1, s[{R_WS}:{R_WS+3}], s35 offen offset:{(ks%4)*1024} sc1", ("x", ks//6))
    NF = 6; PF = 4; FR = 24; HO = 48
    ACC2 = 144; ACC1 = [176, 208]
    seq = []
    for st in range(18):
        for kk in range(12):
            for tt in range(2): seq.append((st, kk, tt))
    for st in range(18, 36):
        if st == 18:
            order = [(kk, tt) for kk in range(4) for tt in range(4)] + [(kk, tt) for kk in range(4) for tt in (4,5)]
        else:
            order = [(kk, tt) for kk in range(4) for tt in range(6)]
        for kk, tt in order: seq.append((st, kk, tt))
    def fread(m):
        st, kk, tt = seq[m]
        slot = st % 6
        r = FR + 4*(m % NF)
        if st < 18:
            base = 8 + 2*(slot//2) + tt
            off = (slot%2)*STG + kk*2048; d2 = 512
        else:
            base = 14 + 2*(slot//2) + (tt&1)
            off = (slot%2)*STG + ((2*kk)*3 + (tt>>1))*1024; d2 = 3072
        p.lds(f"ds_read_b64_tr_b16 {v(r,2)}, v{base} offset:{off}", m)
        p.lds(f"ds_read_b64_tr_b16 {v(r+2,2)}, v{base} offset:{off+d2}", m)
    def epilogue1(ch):
        out = [(f"s_add_u32 s34, s75, {4096*ch}", None)]
        for qq in range(4):
            src = ACC1[ch&1] + 8*qq; dst = HO + 16*ch + 4*qq
            for j in range(4):
                out.append((f"v_cvt_pk_bf16_f32 v{dst+j}, v{src+2*j}, v{src+2*j+1}", None))
            for j in range(4):
                out.append((f"v_pk_max_i16 v{dst+j}, v{dst+j}, 0", None))
            out.append((f"buffer_store_dwordx4 {v(dst,4)}, v1, s[{R_WS}:{R_WS+3}], s34 offen offset:{1024*qq} sc1", ("hst", ch)))
        return out
    def hreg(st, kk):
        rel, sub = g2[st-18]
        if rel == 0: return v(HO + 16*sub + 4*kk, 4)
        base = {(1,0):144, (2,0):192, (1,1):0, (2,1):48}[(rel, sub//3)]
        return a(base + 16*(sub%3) + 4*kk, 4)
    def hloads(half):
        out = []
        for rel in (1, 2):
            for s3 in range(3):
                sub = 3*half + s3
                st = 18 + g2.index((rel, sub))
                out.append((f"s_add_u32 s33, s{75+rel}, {4096*sub}", None))
                for kk in range(4):
                    out.append((f"buffer_load_dwordx4 {hreg(st,kk)}, v1, s[{R_WS}:{R_WS+3}], s33 offen offset:{1024*kk} sc1", ("hp", st)))
        return out
    hflag_load = f"buffer_load_dwordx4 v[20:23], v240, s[{R_WS}:{R_WS+3}], s82 offen sc1"
    def hflag_check(val):
        return ["v_min_u32 v20, v20, v21", "v_min_u32 v20, v20, v22", f"v_cmp_gt_u32 vcc, {val}, v20"]
    p.wait_vm(("x", 0))
    p.e("s_barrier")
    stamp(p)
    for m in range(PF): fread(m)
    q1 = []
    q2 = []
    first2 = set()
    for m, (st, kk, tt) in enumerate(seq):
        loc = m % 24
        if st < 3 and loc % 12 == 0 and tt == 0:
            p.wait_vm(("x", 2*st + loc//12))
        if loc == 24-PF-2 and st < 35:
            p.wait_vm(("w", st+1))
            p.wait_vm(("hp", st+1))
            if st == 12 or st == 21:
                p.wait_vm(("hst", 2 if st == 12 else 5))
                p.e(f"v_mov_b32 v243, {1 if st == 12 else 2}")
                p.vmem(f"buffer_store_dword v243, v240, s[{R_WS}:{R_WS+3}], s83 offen sc1", "flag")
            if st == 17 or st == 26:
                spin_until(p, hflag_load, hflag_check(1 if st == 17 else 2), "poll")
                q2 += hloads(0 if st == 17 else 1)
            p.e("s_barrier")
            stamp(p)
            assert not q1
            if st == 14 or st == 23:
                p.vmem(hflag_load, "poll")
            if st == 33:
                p.e("v_lshlrev_b32 v244, 2, v0")
                p.vmem(f"buffer_load_dword v245, v244, s[{R_DBG}:{R_DBG+3}], 0 offen sc1", "poll2")
            if st+5 < 36: q1 = dma(st+5)
        if m % 2 == 0: p.wait_lg(m+1)
        if st < 18:
            acc = ACC1[(st//3)&1] + 16*tt
            ks = 12*(st%3) + kk
            cop = "0" if ks == 0 else v(acc,16)
            bop = a(4*ks,4)
        else:
            acc = ACC2 + 16*tt
            if tt == 4 and tt not in first2: assert not any("cvt" in t for t,_ in q2), q2
            cop = v(acc,16) if tt in first2 else "0"
            first2.add(tt)
            bop = hreg(st, kk)
        p.e(f"v_mfma_f32_32x32x16_bf16 {v(acc,16)}, {v(FR+4*(m%NF),4)}, {bop}, {cop}")
        if m+PF < len(seq): fread(m+PF)
        if m % 72 == 2 and 0 < m//72 <= 6:
            q2 = epilogue1(m//72 - 1) + q2
        budget = 2 if m % 2 == 0 else 3
        if st == 18: budget += 1
        if q1:
            emit(*q1.pop(0)); budget -= 1
        while budget > 0 and q2:
            t, tag = q2.pop(0); emit(t, tag); budget -= 1
            if t.startswith("buffer"): break
    assert not q1 and not q2
    stamp(p)
    OWN = 48
    TMP = 72
    for g in range(4):
        l_own = newlabel("own"); l_nx = newlabel("nx")
        p.e(f"s_cmp_eq_u32 s68, {g}")
        p.e(f"s_cbranch_scc1 {l_own}")
        p.e(f"s_mul_i32 s33, s68, 3072")
        p.e(f"s_add_u32 s33, s33, s86")
        p.e(f"s_add_u32 s33, s33, {g*4*3072}")
        for pr in range(3):
            src = ACC2 + 24*g + 8*pr; dst = TMP + 12*g + 4*pr
            for j in range(4):
                p.e(f"v_cvt_pk_bf16_f32 v{dst+j}, v{src+2*j}, v{src+2*j+1}")
            p.e(f"buffer_store_dwordx4 {v(dst,4)}, v1, s[{R_WS}:{R_WS+3}], s33 offen offset:{1024*pr} sc1")
        p.e(f"s_branch {l_nx}")
        p.e(f"{l_own}:")
        p.e("s_nop 7"); p.e("s_nop 3")
        for j in range(24): p.e(f"v_mov_b32 v{OWN+j}, v{ACC2+24*g+j}")
        p.e(f"{l_nx}:")
    p.vm += ["pst"]*9
    stamp(p)
    p.e("v_lshlrev_b32 v244, 2, v0")
    spin_until(p, f"buffer_load_dword v245, v244, s[{R_DBG}:{R_DBG+3}], 0 offen sc1", ["v_cmp_gt_u32 vcc, 2, v245"], "poll2")
    p.e(f"""
    v_lshrrev_b32 v20, 2, v0
    v_lshlrev_b32 v20, 12, v20
    v_and_b32 v21, 3, v0
    v_lshl_add_u32 v20, v21, 4, v20             ; (l>>2)*4096 + (l&3)*16
    s_mul_i32 s33, s67, 192
    s_mul_i32 s34, s68, 48
    s_add_u32 s33, s33, s34
    s_lshl_b32 s33, s33, 12
    s_lshl_b32 s34, s69, 6
    s_add_u32 s33, s33, s34
    s_add_u32 s33, s33, {YT}
    s_mul_i32 s34, s3, 3072
    s_add_u32 s34, s34, {YLDS}
    """)
    for i in range(3):
        p.e(f"s_add_u32 m0, s34, {1024*i}")
        p.e(f"s_add_u32 s35, s33, {16*4096*i}")
        p.vmem(f"buffer_load_dwordx4 v20, s[{R_WS}:{R_WS+3}], s35 offen sc1 lds", "y")
    p.wait_vm("pst")
    p.e("v_mov_b32 v243, 1")
    p.vmem(f"buffer_store_dword v243, v240, s[{R_WS}:{R_WS+3}], s85 offen sc1", "flag")
    stamp(p)
    spin_until(p, f"buffer_load_dwordx4 v[20:23], v240, s[{R_WS}:{R_WS+3}], s84 offen sc1",
               ["v_min_u32 v20, v20, v21", "v_min_u32 v22, v22, v23", "v_min_u32 v20, v20, v22", "v_cmp_eq_u32 vcc, 0, v20"], None, sleep=1)
    stamp(p)
    p.e(f"s_mul_i32 s33, s68, {4*3072}")
    p.e("s_add_u32 s33, s33, s86")
    for k in range(1, 4):
        p.e(f"s_add_u32 s88, s68, {k}")
        p.e("s_and_b32 s88, s88, 3")
        p.e("s_mul_i32 s88, s88, 3072")
        p.e("s_add_u32 s88, s88, s33")
        for pr in range(3):
            p.vmem(f"buffer_load_dwordx4 {v(144+12*(k-1)+4*pr,4)}, v1, s[{R_WS}:{R_WS+3}], s88 offen offset:{1024*pr} sc1", ("pl", k))
    p.e(f"""
    v_and_b32 v20, 15, v0
    v_lshrrev_b32 v21, 2, v20
    v_lshlrev_b32 v21, 6, v21
    v_lshrrev_b32 v22, 5, v0
    v_lshl_add_u32 v21, v22, 8, v21
    v_bfe_u32 v22, v0, 4, 1
    v_lshl_add_u32 v21, v22, 5, v21
    v_and_b32 v22, 3, v20
    v_lshl_add_u32 v21, v22, 3, v21
    v_add_u32 v21, s34, v21
    """)
    YR = 120; XR = 132
    for j in range(6):
        p.lds(f"ds_read_b64_tr_b16 {v(YR+2*j,2)}, v21 offset:{512*j}")
    for j in range(12):
        p.e(f"v_accvgpr_read_b32 v{XR+j}, a{240+j}")
    p.wait_lg_all()
    B = 184
    for j in range(12):
        p.e(f"""
        v_lshlrev_b32 v22, 16, v{XR+j}
        v_and_b32 v23, 0xffff0000, v{XR+j}
        v_lshlrev_b32 v{B+2*j}, 16, v{YR+j}
        v_and_b32 v{B+2*j+1}, 0xffff0000, v{YR+j}
        v_add_f32 v22, v22, v{B+2*j}
        v_add_f32 v23, v23, v{B+2*j+1}
        v_cvt_pk_bf16_f32 v22, v22, v23
        v_lshlrev_b32 v{B+2*j}, 16, v22
        v_and_b32 v{B+2*j+1}, 0xffff0000, v22
        """)
    for k in range(1, 4):
        p.wait_vm(("pl", k))
        for j in range(12):
            r = 144+12*(k-1)+j
            p.e(f"""
            v_lshlrev_b32 v22, 16, v{r}
            v_and_b32 v23, 0xffff0000, v{r}
            v_pk_add_f32 {v(OWN+2*j,2)}, {v(OWN+2*j,2)}, v[22:23]
            """)
    O = 72
    for j in range(12):
        p.e(f"""
        v_cvt_pk_bf16_f32 v22, v{OWN+2*j}, v{OWN+2*j+1}
        v_and_b32 v23, 0xffff0000, v22
        v_lshlrev_b32 v22, 16, v22
        v_pk_add_f32 v[22:23], v[22:23], {v(B+2*j,2)}
        v_cvt_pk_bf16_f32 v{O+j}, v22, v23
        """)
    for pr in range(3):
        r = O + 4*pr
        p.e(f"v_permlane32_swap_b32 v{r}, v{r+2}")
        p.e(f"v_permlane32_swap_b32 v{r+1}, v{r+3}")
        p.vmem(f"buffer_store_dwordx4 {v(r,4)}, v242, s[{R_OUT}:{R_OUT+3}], s87 offen offset:{32*pr}")
    stamp_end(p)
    p.e("s_endpgm")

LN_PITCH = 1168
UP = 4592
UBASE = 0
WBASE = 41344
TABSZ = 6144; CPS = 4160
WSZ = TABSZ + 4*CPS
TAB, CP = 0, TABSZ
ZENT = 3070
KP = 528
def ssm_role(p):
    St.n = 0
    p.vm = []; p.lg = []
    stamp_begin(p)
    p.e(f"""
    s_sub_u32 s66, s24, 24
    s_lshl_b32 s66, s66, 3
    s_add_u32 s66, s66, s23
    s_mul_i32 s67, s3, {WSZ}
    s_add_u32 s67, s67, {WBASE}
    s_mul_i32 s68, s66, 9
    v_lshlrev_b32 v1, 4, v0
    v_lshrrev_b32 v2, 3, v0
    s_lshl_b32 s25, s3, 3
    v_add_u32 v2, s25, v2
    v_and_b32 v3, 7, v0
    v_mul_u32_u24 v4, 1152, v2
    v_lshl_add_u32 v4, v3, 4, v4
    s_mul_i32 s69, s66, 36864
    v_mov_b32 v240, 0
    v_mov_b32 v241, 0
    v_mov_b32 v242, 0
    v_mov_b32 v243, 0
    s_waitcnt lgkmcnt(0)
    """)
    srd(p, R_X, P_X, SZ_X)
    X = 8; F = 48
    for i in range(9):
        p.vmem(f"buffer_load_dwordx4 {v(X+4*i,4)}, v4, s[{R_X}:{R_X+3}], s69 offen offset:{128*i}", ("x", i))
    srd(p, R_WS, P_WS, WSSZ)
    srd(p, R_DBG, P_DBG, 256)
    p.e("s_lshl_b32 s25, s66, 10")
    p.e(f"s_add_u32 s25, s25, {MB}")
    p.vmem(f"buffer_store_dwordx4 v[240:243], v1, s[{R_WS}:{R_WS+3}], s25 offen sc1", "mb")
    PR = 192
    p.e("v_lshlrev_b32 v5, 2, v0")
    p.e("s_add_u32 s70, s68, s3")
    p.e("s_add_u32 s71, s70, 4")
    p.e("s_add_u32 s72, s68, 8")
    for k in range(6):
        srd(p, 8, P_ARE+2*k, 576*128*2)
        for c in range(3):
            p.e(f"s_lshl_b32 s25, s{70+c}, 8")
            p.vmem(f"buffer_load_dword v{PR+6*c+k}, v5, s[8:11], s25 offen", "prm")
    for c in range(3):
        p.e(f"""
        s_lshl_b32 s25, s{70+c}, 1
        s_and_b32 s25, s25, 0xfffffffc
        s_add_u32 s26, s{P_LOGDT}, s25
        s_addc_u32 s27, s{P_LOGDT+1}, 0
        s_load_dword s{74+c}, s[26:27], 0
        s_add_u32 s26, s{P_D}, s25
        s_addc_u32 s27, s{P_D+1}, 0
        s_load_dword s{77+c}, s[26:27], 0
        """)
    p.e(f"v_mul_u32_u24 v4, {LN_PITCH}, v2")
    p.e("v_lshl_add_u32 v4, v3, 4, v4")
    p.e("v_mov_b32 v6, 0"); p.e("v_mov_b32 v7, 0")
    for i in range(9):
        p.wait_vm(("x", i))
        for j in range(4):
            r = X+4*i+j; f = F+8*i+2*j
            p.e(f"v_lshlrev_b32 v{f}, 16, v{r}")
            p.e(f"v_and_b32 v{f+1}, 0xffff0000, v{r}")
            p.e(f"v_pk_add_f32 v[6:7], v[6:7], {v(f,2)}")
    stamp(p)
    def red8(r):
        p.e(f"v_add_f32_dpp v{r}, v{r}, v{r} quad_perm:[1,0,3,2] row_mask:0xf bank_mask:0xf")
        p.e(f"v_add_f32_dpp v{r}, v{r}, v{r} quad_perm:[2,3,0,1] row_mask:0xf bank_mask:0xf")
        p.e(f"v_add_f32_dpp v{r}, v{r}, v{r} row_half_mirror row_mask:0xf bank_mask:0xf")
    p.e("v_add_f32 v6, v6, v7")
    red8(6)
    p.e(f"v_mul_f32 v6, {f32(1.0/576)}, v6")
    bf16r(p, "v44", "v6")
    p.e("v_sub_f32 v6, v6, v44")
    p.e("v_mov_b32 v46, 0"); p.e("v_mov_b32 v47, 0")
    for k in range(0, 72, 2):
        p.e(f"v_pk_add_f32 {v(F+k,2)}, {v(F+k,2)}, v[44:45] op_sel_hi:[1,0] neg_lo:[0,1] neg_hi:[0,1]")
        p.e(f"v_pk_fma_f32 v[46:47], {v(F+k,2)}, {v(F+k,2)}, v[46:47]")
        p.e(f"v_cvt_pk_bf16_f32 v{X+k//2}, v{F+k}, v{F+k+1}")
    p.e("v_add_f32 v46, v46, v47")
    red8(46)
    p.e(f"v_mul_f32 v46, {f32(1.0/576)}, v46")
    p.e("v_fma_f32 v46, -v6, v6, v46")
    p.e("v_max_f32 v46, 0, v46")
    bf16r(p, "v46", "v46")
    p.e(f"v_add_f32 v46, {f32(1e-5)}, v46")
    bf16r(p, "v46", "v46")
    p.e("v_sqrt_f32 v46, v46")
    bf16r(p, "v46", "v46")
    p.e("v_rcp_f32 v44, v46")
    for i in range(9):
        for j in range(4):
            r = X+4*i+j
            p.e(f"v_lshlrev_b32 v6, 16, v{r}")
            p.e(f"v_and_b32 v7, 0xffff0000, v{r}")
            p.e(f"v_pk_mul_f32 v[6:7], v[6:7], v[44:45] op_sel_hi:[1,0]")
            p.e(f"v_cvt_pk_bf16_f32 v{r}, v6, v7")
        p.e(f"ds_write_b128 v4, {v(X+4*i,4)} offset:{128*i}")
    p.e(f"""
    v_and_b32 v3, 31, v0
    v_mul_u32_u24 v3, {LN_PITCH}, v3
    v_lshrrev_b32 v4, 5, v0
    v_lshl_add_u32 v3, v4, 4, v3
    s_mul_i32 s25, s3, {9*32}
    v_add_u32 v3, s25, v3
    s_mul_i32 s25, s3, {9*1024}
    s_add_u32 s25, s25, s69
    s_waitcnt lgkmcnt(0)
    s_barrier
    """)
    for i in range(9):
        p.lds(f"ds_read_b128 {v(X+4*i,4)}, v3 offset:{32*i}", i)
    for i in range(9):
        p.wait_lg(i)
        if i % 4 == 0: p.e(f"s_add_u32 s26, s25, {1024*i}")
        p.vmem(f"buffer_store_dwordx4 {v(X+4*i,4)}, v1, s[{R_WS}:{R_WS+3}], s26 offen offset:{1024*(i%4)} sc1", "xn")
    stamp(p)
    GA = 210
    p.e(f"""
    v_and_b32 v20, 15, v0
    v_lshrrev_b32 v21, 4, v0
    v_lshlrev_b32 v8, 3, v0
    v_mov_b32 v9, {2*ZENT}
    """)
    def gaddr(it, k):
        c = 2047 - 512*it - k
        g = GA + 11*it + k
        p.e(f"v_sub_u32 v{g}, {c}, v8")
        if it == 3 and k >= 8: p.e(f"v_cmp_gt_i32 vcc, 0, v{g}")
        p.e(f"v_cvt_f32_i32 v{g}, v{g}")
        p.e(f"v_cvt_pk_bf16_f32 v{g}, v{g}, v{g}")
        p.e(f"v_lshlrev_b32 v{g}, 16, v{g}")
        p.e(f"v_cvt_i32_f32 v{g}, v{g}")
        if it == 3 and k >= 8:
            p.e(f"v_lshlrev_b32 v{g}, 1, v{g}")
            p.e(f"v_cndmask_b32 v{g}, v{g}, v9, vcc")
            p.e(f"v_add_u32 v{g}, s67, v{g}")
        else:
            p.e(f"v_lshl_add_u32 v{g}, v{g}, 1, s67")
    for it in range(2):
        for k in range(11): gaddr(it, k)
    p.wait_vm_all()
    p.e("s_barrier")
    lab = newlabel("f1")
    p.e("s_cmp_lg_u32 s3, 0")
    p.e(f"s_cbranch_scc1 {lab}")
    p.e("s_lshl_b32 s25, s66, 2")
    p.e("v_mov_b32 v10, 1")
    p.e("v_mov_b32 v11, 0")
    p.e(f"buffer_store_dword v10, v11, s[{R_DBG}:{R_DBG+3}], s25 offen sc1")
    p.e(f"{lab}:")
    stamp(p)
    for it in range(2, 4):
        for k in range(11): gaddr(it, k)
    p.e(f"""
    v_lshl_add_u32 v10, v0, 3, s67
    v_mul_u32_u24 v11, {KP}, v20
    v_and_b32 v4, 1, v21
    v_lshl_add_u32 v11, v4, 8, v11
    v_lshrrev_b32 v5, 1, v21
    v_lshl_add_u32 v11, v5, 7, v11
    v_add_u32 v11, s67, v11
    v_lshl_add_u32 v7, v20, 4, s67
    v_lshlrev_b32 v4, 3, v4
    v_lshl_add_u32 v4, v5, 8, v4
    v_add_u32 v12, v4, v7
    v_lshlrev_b32 v4, 8, v21
    v_add_u32 v4, 512, v4
    v_lshlrev_b32 v5, 9, v21
    v_cmp_gt_u32 vcc, 2, v21
    v_cndmask_b32 v4, v5, v4, vcc
    v_add_u32 v13, v4, v7
    v_mov_b32 v8, 4
    v_cndmask_b32 v5, 8, v8, vcc
    v_add_u32 v14, v5, v13
    v_mov_b32 v9, 256
    v_mov_b32 v8, 8
    v_cndmask_b32 v6, v9, v8, vcc
    v_add_u32 v15, v6, v13
    v_add_u32 v16, v6, v14
    v_lshl_add_u32 v17, v21, 10, v7
    v_add_u32 v18, s67, v1
    v_lshl_add_u32 v4, v21, 3, v20
    v_sub_u32 v4, 39, v4
    v_and_b32 v5, 3, v4
    v_mul_u32_u24 v5, {CPS}, v5
    v_lshrrev_b32 v4, 2, v4
    v_lshl_add_u32 v4, v4, 3, v5
    v_add_u32 v19, s67, v4
    v_lshlrev_b32 v5, 5, v20
    v_lshlrev_b32 v6, 4, v21
    v_sub_u32 v22, v5, v6
    v_add_u32 v22, 48, v22
    v_lshl_add_u32 v23, v21, 3, v5
    v_mov_b32 v24, 0
    v_mov_b32 v25, 0
    v_mov_b32 v26, 0
    v_mov_b32 v27, 0
    v_bfe_u32 v4, v0, 2, 2
    v_mul_u32_u24 v4, {CPS}, v4
    v_and_b32 v5, 3, v0
    v_lshl_add_u32 v4, v5, 4, v4
    v_add_u32 v2, s67, v4
    s_waitcnt lgkmcnt(0)
    """)
    for c in range(3):
        p.e(f"""
        s_and_b32 s25, s{70+c}, 1
        s_lshl_b32 s25, s25, 4
        s_lshr_b32 s{74+c}, s{74+c}, s25
        s_lshl_b32 s{74+c}, s{74+c}, 16
        s_lshr_b32 s{77+c}, s{77+c}, s25
        s_lshl_b32 s{77+c}, s{77+c}, 16
        """)
    p.e("s_mov_b32 s80, 0")
    p.e("s_mov_b32 s81, s3")
    p.e("L_ssm_loop:")
    p.e(f"""
    v_mov_b32 v4, {f32(LOG2E)}
    v_mul_f32 v4, s74, v4
    v_exp_f32 v4, v4
    """)
    bf16r(p, "v4", "v4")
    U0 = 28
    for k in range(6):
        p.e(f"v_lshlrev_b32 v{U0+2*k}, 16, v{PR+k}")
        p.e(f"v_and_b32 v{U0+2*k+1}, 0xffff0000, v{PR+k}")
    for k in range(4):
        p.e(f"v_pk_mul_f32 {v(U0+2*k,2)}, {v(U0+2*k,2)}, v[4:5] op_sel_hi:[1,0]")
    p.e(f"v_mul_f32 v28, {f32(LOG2E)}, v28"); p.e(f"v_mul_f32 v29, {f32(LOG2E)}, v29")
    p.e(f"v_mul_f32 v30, {f32(INV2PI)}, v30"); p.e(f"v_mul_f32 v31, {f32(INV2PI)}, v31")
    Y, Z8, Z1, Q1, Q, P, P2, P4, P6, T1, T2 = 40, 44, 48, 52, 56, 60, 64, 68, 72, 76, 80
    Yb, Qb, Pb = 84, 88, 92
    D0 = 96
    dcnt = [0, 0]
    def cmul(d, x, y):
        return [f"v_pk_mul_f32 {v(d,2)}, {v(x,2)}, {v(y,2)}",
                f"v_pk_mul_f32 {v(d+2,2)}, {v(x,2)}, {v(y+2,2)}",
                f"v_pk_fma_f32 {v(d,2)}, {v(x+2,2)}, {v(y+2,2)}, {v(d,2)} neg_lo:[1,0,0] neg_hi:[1,0,0]",
                f"v_pk_fma_f32 {v(d+2,2)}, {v(x+2,2)}, {v(y,2)}, {v(d+2,2)}"]
    def put(row, x, ring=0):
        d = D0 + 8*ring + 2*(dcnt[ring] % 4); dcnt[ring] += 1
        return [f"v_cvt_pk_bf16_f32 v{d}, v{x}, v{x+2}",
                f"v_cvt_pk_bf16_f32 v{d+1}, v{x+1}, v{x+3}",
                f"ds_write_b64 v10, {v(d,2)} offset:{row*KP}"]
    p.e(f"v_pk_mul_f32 {v(Y,2)}, v[36:37], v[32:33]")
    p.e(f"v_pk_mul_f32 {v(Y+2,2)}, v[36:37], v[34:35] neg_lo:[1,0] neg_hi:[1,0]")
    p.e(f"v_pk_fma_f32 {v(Y,2)}, v[38:39], v[34:35], {v(Y,2)} neg_lo:[1,0,0] neg_hi:[1,0,0]")
    p.e(f"v_pk_fma_f32 {v(Y+2,2)}, v[38:39], v[32:33], {v(Y+2,2)} neg_lo:[1,0,0] neg_hi:[1,0,0]")
    def direct(d, rho, conj):
        for n in range(2):
            p.e(f"v_mul_f32 v{T1+n}, {f32(float(rho))}, v{28+n}")
            p.e(f"v_mul_f32 v{T1+2+n}, {f32(float(-rho if conj else rho))}, v{30+n}")
        for n in range(2):
            p.e(f"v_fract_f32 v{T1+2+n}, v{T1+2+n}")
            p.e(f"v_exp_f32 v{T1+n}, v{T1+n}")
        for n in range(2):
            p.e(f"v_cos_f32 v{d+n}, v{T1+2+n}")
            p.e(f"v_sin_f32 v{d+2+n}, v{T1+2+n}")
        p.e(f"v_pk_mul_f32 {v(d,2)}, {v(d,2)}, {v(T1,2)}")
        p.e(f"v_pk_mul_f32 {v(d+2,2)}, {v(d+2,2)}, {v(T1,2)}")
    direct(Z8, 8, True); direct(Z1, 1, False); direct(Q1, 128, False)
    def interleave(*streams):
        streams = [list(s) for s in streams]
        while any(streams):
            for s_ in streams:
                for _ in range(2):
                    if s_: p.e(s_.pop(0))
    sy = put(0, Y); cur, oth = Y, Yb
    for c in range(1, 16):
        sy += cmul(oth, cur, Z8) + put(c, oth); cur, oth = oth, cur
    sx = [f"v_mov_b32 v{T2}, 0x3f80", f"v_mov_b32 v{T2+1}, 0x3f80", f"ds_write_b64 v10, {v(T2,2)} offset:{16*KP}"]
    sx += put(17, Z1, 1) + put(24, Q1, 1) + cmul(T1, Q1, Z1) + put(25, T1, 1)
    prev = Z1
    for k in range(2, 8):
        dst = {2: P2, 4: P4, 6: P6}.get(k, P)
        sx += cmul(dst, prev, Z1) + put(16+k, dst, 1) + cmul(T1, Q1, dst) + put(24+k, T1, 1)
        prev = dst
    interleave(sy, sx)
    YF = 112; XF = 144
    KA = 176
    p.e("s_waitcnt lgkmcnt(0)")
    for s_ in range(8):
        p.e(f"ds_read_b128 {v(YF+4*s_,4)}, v11 offset:{16*s_}")
        p.e(f"ds_read_b128 {v(XF+4*s_,4)}, v11 offset:{16*KP+16*s_}")
    pre = cmul(Q, Q1, Q1) + cmul(Qb, Q, Q1)
    for t in pre: p.e(t)
    p.e("s_waitcnt lgkmcnt(0)")
    mf = [f"v_mfma_f32_16x16x32_bf16 {v(KA,4)}, {v(XF+4*s_,4)}, {v(YF+4*s_,4)}, {'0' if s_==0 else v(KA,4)}" for s_ in range(8)]
    for t in mf: p.e(t)
    sa = put(0, Q)
    for i, pp in enumerate((P2, P4, P6)): sa += cmul(T1, Q, pp) + put(1+i, T1)
    sb = put(4, Qb)
    for i, pp in enumerate((P2, P4, P6)): sb += cmul(T2, Qb, pp) + put(5+i, T2)
    sc = cmul(Y, Qb, Q1); cur, oth = Y, Yb
    sd = []
    for m_ in range(4, 17):
        row = 8+2*(m_-4) if m_ < 8 else 16 + (m_-8)
        sc += put(row, cur, 1)
        if m_ < 8: sc += cmul(P, cur, P4) + put(row+1, P, 1)
        if m_ < 16:
            sc += cmul(oth, cur, Q1); cur, oth = oth, cur
    interleave(sa + sb, sc)
    p.e("s_waitcnt lgkmcnt(0)")
    X2F = 28
    for s_ in range(8):
        p.lds(f"ds_read_b128 {v(XF+4*s_,4)}, v11 offset:{16*s_}", ("a", s_))
    for s_ in range(7):
        p.lds(f"ds_read_b128 {v(X2F+4*s_,4)}, v11 offset:{16*KP+16*s_}", ("b", s_))
    for s_ in range(8):
        p.wait_lg(("a", s_))
        p.e(f"v_mfma_f32_16x16x32_bf16 {v(KA+4,4)}, {v(XF+4*s_,4)}, {v(YF+4*s_,4)}, {'0' if s_==0 else v(KA+4,4)}")
        if s_ == 0: p.lds(f"ds_read_b128 {v(X2F+28,4)}, v11 offset:{16*KP+16*7}", ("b", 7))
    for s_ in range(8):
        p.wait_lg(("b", s_))
        p.e(f"v_mfma_f32_16x16x32_bf16 {v(KA+8,4)}, {v(X2F+4*s_,4)}, {v(YF+4*s_,4)}, {'0' if s_==0 else v(KA+8,4)}")
    p.e(f"""
    v_cmp_eq_u32 vcc, 0, v0
    v_mov_b32 v4, s77
    v_cndmask_b32 v4, 0, v4, vcc
    v_add_f32 v{KA}, v{KA}, v4
    v_cvt_pk_bf16_f32 v60, v{KA}, v{KA+1}
    v_cvt_pk_bf16_f32 v61, v{KA+2}, v{KA+3}
    v_cvt_pk_bf16_f32 v62, v{KA+4}, v{KA+5}
    v_cvt_pk_bf16_f32 v63, v{KA+6}, v{KA+7}
    ds_write_b64 v12, v[60:61] offset:{TAB}
    ds_write_b16 v13, v62 offset:{TAB}
    ds_write_b16_d16_hi v14, v62 offset:{TAB}
    ds_write_b16 v15, v63 offset:{TAB}
    ds_write_b16_d16_hi v16, v63 offset:{TAB}
    v_mov_b32 v4, s67
    ds_write_b32 v4, v24 offset:{TAB+2*ZENT}
    v_cvt_pk_bf16_f32 v64, v{KA+8}, v{KA+9}
    v_cvt_pk_bf16_f32 v65, v{KA+10}, v{KA+11}
    ds_write_b16 v17, v64 offset:{TAB+2048}
    ds_write_b16_d16_hi v17, v64 offset:{TAB+2048+256}
    ds_write_b16 v17, v65 offset:{TAB+2048+512}
    ds_write_b16_d16_hi v17, v65 offset:{TAB+2048+768}
    """)
    stamp(p)
    skipu = newlabel("skipu")
    p.e("s_cmp_lg_u32 s80, 0")
    p.e(f"s_cbranch_scc1 {skipu}")
    p.e("v_lshlrev_b32 v4, 2, v0")
    spin_until(p, f"buffer_load_dword v5, v4, s[{R_DBG}:{R_DBG+3}], 0 offen sc1", ["v_cmp_eq_u32 vcc, 0, v5"], None, sleep=8)
    p.e(f"""
    s_lshr_b32 s25, s68, 3
    s_lshl_b32 s26, s25, 3
    s_sub_u32 s82, s68, s26              ; e0
    s_lshl_b32 s25, s25, 9
    s_mul_i32 s26, s3, {16*36864}
    s_add_u32 s25, s25, s26
    """)
    for i in range(16):
        p.e(f"s_add_u32 m0, s67, {CP+1024*i}")
        p.e(f"s_add_u32 s26, s25, {36864*i}")
        p.vmem(f"buffer_load_dwordx4 v1, s[{R_WS}:{R_WS+3}], s26 offen sc1 lds", ("u", i))
    p.e(f"""
    v_min_u32 v4, 29, v0
    v_lshlrev_b32 v4, 4, v4
    s_mul_i32 s26, s3, {UP}
    v_add_u32 v5, s26, v4
    ds_write_b128 v5, v[24:27] offset:{UBASE}
    ds_write_b128 v5, v[24:27] offset:{UBASE+4*UP}
    ds_write_b128 v4, v[24:27] offset:{UBASE+8*UP}
    v_lshrrev_b32 v4, 2, v20
    v_lshl_add_u32 v4, v21, 3, v4
    v_lshlrev_b32 v4, 4, v4
    v_bfe_u32 v5, v20, 1, 1
    v_lshl_add_u32 v4, v5, 9, v4
    v_and_b32 v5, 1, v20
    v_lshl_add_u32 v4, v5, 3, v4
    v_add_u32 v4, s67, v4
    v_subrev_u32 v5, s82, v20
    v_cmp_gt_u32 vcc, 9, v5
    v_mul_u32_u24 v5, {UP}, v5
    v_lshl_add_u32 v5, v21, 4, v5
    s_lshl_b32 s26, s3, 10
    v_add_u32 v5, s26, v5
    """)
    TR = 112
    for i in range(16):
        p.wait_vm(("u", i))
        p.e(f"ds_read_b64_tr_b16 {v(TR+4*i,2)}, v4 offset:{CP+1024*i}")
        p.e(f"ds_read_b64_tr_b16 {v(TR+4*i+2,2)}, v4 offset:{CP+1024*i+64}")
    p.e("s_waitcnt lgkmcnt(0)")
    p.e("s_and_saveexec_b64 s[26:27], vcc")
    for i in range(16):
        p.e(f"ds_write_b128 v5, {v(TR+4*i,4)} offset:{UBASE+480+64*i}")
    p.e("s_mov_b64 exec, s[26:27]")
    p.e("s_waitcnt lgkmcnt(0)")
    p.e("s_barrier")
    p.e(f"{skipu}:")
    stamp(p)
    p.e("s_waitcnt lgkmcnt(0)"); p.lg = []
    p.e(f"ds_write_b128 v2, v[24:27] offset:{CP+4096}")
    G = [28, 40]; PK = 52
    def gath(it):
        for k in range(11): p.lds(f"ds_read_u16 v{G[it&1]+k}, v{GA+11*it+k} offset:{TAB}", ("g", it))
    gath(0)
    for it in range(4):
        p.wait_lg(("g", it))
        if it < 3: gath(it+1)
        g = G[it&1]
        for c in range(4):
            pk = PK + 16*(it&1) + 4*c
            for j in range(4):
                i = c+2*j
                p.e(f"v_lshl_or_b32 v{pk+j}, v{g+i+1}, 16, v{g+i}")
            p.lds(f"ds_write_b128 v18, {v(pk,4)} offset:{CP+CPS*c+1024*it}", ("c", it))
    p.e(f"s_mul_i32 s25, s81, {UP}")
    p.e("v_add_u32 v3, s25, v22")
    p.wait_lg_all()
    stamp(p)
    AF = [64, 128]; BF = [96, 160]; CA = 28
    def loads(s0, buf):
        out = []
        for k in range(8):
            oa = CP + 512*(7-k) + 64*(7-s0)
            out.append(f"ds_read_b64 {v(AF[buf]+4*k,2)}, v19 offset:{oa}")
            out.append(f"ds_read_b64 {v(AF[buf]+4*k+2,2)}, v19 offset:{oa+8}")
            ob = UBASE + 512*k + 64*(7-s0)
            out.append(f"ds_read_b128 {v(BF[buf]+4*k,4)}, v3 offset:{ob}")
        return out
    for t in loads(0, 0): p.e(t)
    p.e("s_waitcnt lgkmcnt(0)")
    for s0 in range(8):
        buf = s0 & 1
        nxt = loads(s0+1, buf ^ 1) if s0 < 7 else []
        cnt = 0
        for s1 in range(8):
            for dl in range(8-s1):
                jt = s1+dl
                cop = "0" if (s0 == 0 and s1 == 0) else v(CA+4*jt,4)
                p.e(f"v_mfma_f32_16x16x32_bf16 {v(CA+4*jt,4)}, {v(AF[buf]+4*s1,4)}, {v(BF[buf]+4*dl,4)}, {cop}")
                cnt += 1
                if nxt and cnt >= 2: p.e(nxt.pop(0))
        assert not nxt
        p.e("s_waitcnt lgkmcnt(0)")
    p.e("s_lshl_b32 s25, s70, 12")
    p.e(f"s_add_u32 s25, s25, {YT}")
    for jt in range(8):
        p.e(f"v_cvt_pk_bf16_f32 v{64+2*jt}, v{CA+4*jt}, v{CA+4*jt+1}")
        p.e(f"v_cvt_pk_bf16_f32 v{65+2*jt}, v{CA+4*jt+2}, v{CA+4*jt+3}")
        p.e(f"buffer_store_dwordx2 {v(64+2*jt,2)}, v23, s[{R_WS}:{R_WS+3}], s25 offen offset:{512*jt} sc1")
    stamp(p)
    for k in range(12): p.e(f"v_mov_b32 v{PR+k}, v{PR+6+k}")
    p.e("""
    s_mov_b32 s70, s71
    s_mov_b32 s71, s72
    s_mov_b32 s74, s75
    s_mov_b32 s75, s76
    s_mov_b32 s77, s78
    s_mov_b32 s78, s79
    s_add_u32 s80, s80, 1
    s_add_u32 s81, s81, 4
    s_cmp_lt_u32 s81, 9
    s_cbranch_scc1 L_ssm_loop
    s_waitcnt vmcnt(0)
    s_barrier
    """)
    lab = newlabel("f2")
    p.e("s_cmp_lg_u32 s3, 0")
    p.e(f"s_cbranch_scc1 {lab}")
    p.e("s_lshl_b32 s25, s66, 2")
    p.e("v_mov_b32 v10, 2")
    p.e(f"buffer_store_dword v10, v24, s[{R_DBG}:{R_DBG+3}], s25 offen sc1")
    p.e(f"{lab}:")
    stamp_end(p)
    p.e("s_endpgm")

def build(path):
    p = Prog()
    p.e(f".globl {KNAME}")
    p.e(".p2align 8")
    p.e(f".type {KNAME},@function")
    p.e(f"{KNAME}:")
    p.e(f"""
    s_cmp_ge_u32 s2, 256
    s_cbranch_scc1 L_exit
    s_load_dwordx16 s[36:51], s[0:1], 0
    s_load_dwordx8 s[52:59], s[0:1], 64
    s_load_dwordx4 s[60:63], s[0:1], 96
    s_load_dwordx2 s[64:65], s[0:1], 112
    v_lshrrev_b32 v1, 6, v0
    v_and_b32 v0, 63, v0
    v_readfirstlane_b32 s3, v1
    s_and_b32 s23, s2, 7
    s_lshr_b32 s24, s2, 3
    s_cmp_lt_u32 s24, 24
    s_cbranch_scc1 L_mlp
    """)
    ssm_role(p)
    p.e("L_exit:")
    p.e("s_endpgm")
    p.e("L_mlp:")
    p.vm = []; p.lg = []
    mlp_role(p)
    ref = open(f"cdna_kernels/{NAME}.s.ref").read().split("\n")
    head = [l for l in ref if l.startswith(";") and "@launch" not in l]
    out = "\n".join(head) + "\n"
    out += f"; @launch grid=(256,1,1) block=(256,1,1) lds={LDS_BYTES}\n"
    out += '.amdgcn_target "amdgcn-amd-amdhsa--gfx950"\n.text\n'
    out += p.text()
    out += f""".section .rodata,"a"
.p2align 6
.amdhsa_kernel {KNAME}
  .amdhsa_next_free_vgpr 512
  .amdhsa_next_free_sgpr 102
  .amdhsa_accum_offset 256
  .amdhsa_group_segment_fixed_size 0
  .amdhsa_kernarg_size 120
  .amdhsa_user_sgpr_count 2
  .amdhsa_user_sgpr_kernarg_segment_ptr 1
  .amdhsa_system_sgpr_workgroup_id_x 1
.end_amdhsa_kernel
"""
    open(path, "w").write(out)
    print("wrote", path, len(out), "bytes; nops added", p.nops_added)

if __name__ == "__main__":
    if "-s" in sys.argv: STAMP = True; sys.argv.remove("-s")
    path = sys.argv[1] if len(sys.argv) > 1 else f"cdna_kernels/{NAME}.s"
    build(path)
```

```python
import sys, math
from asmlib import *

NAME = "parallel_sum__ssm_conv_s4__dense_activation_relu__prompt"
KNAME = NAME + "_kernel"
XNF, YT, HF, PX, MB, CS, NM, RI, MBX = 0x0, 0x240000, 0x480000, 0x1680000, 0x1F80000, 0x1F90000, 0x1FC0000, 0x1FC2000, 0x1FD0000
WSSZ = 0x2000000
DBGOFF = 0x3000000
SZ_X = 2048*576*2
SZ_W = 576*4608*2
LOG2E = 1.4426950408889634
INV2PI = 0.15915494309189535
STAMP = False
STG = 24576
XLDS = 4*STG
YLDS = 6*STG
LDS_BYTES = 163840
P_X, P_ARE, P_LOGDT, P_D, P_W1, P_W2, P_OUT, P_DBG, P_WS = 36, 38, 50, 52, 56, 58, 60, 62, 64
R_W1, R_W2, R_WS, R_X, R_OUT, R_DBG = 8, 12, 16, 20, 24, 28
def R(r): return f"s[{r}:{r+3}]"
VST = 255; SST = 100
OPT = dict(npre=2, poll1=6, e0=10, hf1=15, hp1=16, hc1=19, hf2=21, hp2=23, hc2=26, hpace=3, rot=1, codepf=1, t1=99, t2=99, rb=0, bud=2, hsc1=1)

def srd(p, d, lo, size, off=0):
    if off > 0:
        p.e(f"s_add_u32 s{d}, s{lo}, {off:#x}"); p.e(f"s_addc_u32 s{d+1}, s{lo+1}, 0")
    elif off < 0:
        p.e(f"s_sub_u32 s{d}, s{lo}, {-off:#x}"); p.e(f"s_subb_u32 s{d+1}, s{lo+1}, 0")
    else:
        p.e(f"s_mov_b32 s{d}, s{lo}"); p.e(f"s_mov_b32 s{d+1}, s{lo+1}")
    p.e(f"s_mov_b32 s{d+2}, {size:#x}"); p.e(f"s_mov_b32 s{d+3}, 0x00020000")

class St:
    n = 0; dyn = False
def _idx(p):
    if St.dyn:
        p.e("s_add_u32 m0, m0, 1"); p.e("s_nop 0"); return "m0"
    St.n += 1; assert St.n < 63
    return str(St.n)
def stamp_begin(p, dyn=False):
    St.n = 0; St.dyn = dyn
    if not STAMP: return
    p.e(f"v_mov_b32 v{VST}, -1"); p.e(f"s_memrealtime s[{SST}:{SST+1}]"); p.e("s_waitcnt lgkmcnt(0)")
    p.e(f"v_writelane_b32 v{VST}, s{SST}, 0"); p.e(f"s_memtime s[{SST}:{SST+1}]")
    if dyn: p.e("s_mov_b32 m0, 0")
def stamp(p):
    if not STAMP: return
    i = _idx(p)
    p.e(f"v_writelane_b32 v{VST}, s{SST}, {i}"); p.e(f"s_memtime s[{SST}:{SST+1}]")
def stamp_end(p):
    if not STAMP: return
    p.e("s_waitcnt vmcnt(0) lgkmcnt(0)"); stamp(p); p.e("s_waitcnt lgkmcnt(0)")
    i = _idx(p); p.e(f"v_writelane_b32 v{VST}, s{SST}, {i}")
    p.e(f"s_memrealtime s[{SST}:{SST+1}]"); p.e("s_waitcnt lgkmcnt(0)")
    i = _idx(p); p.e(f"v_writelane_b32 v{VST}, s{SST}, {i}")
    srd(p, 8, P_WS, 0x1000000, DBGOFF)
    p.e("s_lshl_b32 s35, s2, 2\ns_add_u32 s35, s35, s3\ns_lshl_b32 s35, s35, 8\nv_lshlrev_b32 v2, 2, v0")
    p.e(f"buffer_store_dword v{VST}, v2, s[8:11], s35 offen")

def bf16r(p, dst, src):
    p.e(f"v_cvt_pk_bf16_f32 {dst}, {src}, {src}"); p.e(f"v_lshlrev_b32 {dst}, 16, {dst}")
_lab = [0]
def newlabel(s):
    _lab[0] += 1; return f"L_{s}_{_lab[0]}"

def spin_until(p, load, check, first_tag=None, sleep=2):
    ok = newlabel("ok"); lp = newlabel("spin")
    if first_tag is not None:
        p.wait_vm(first_tag)
        for c in check: p.e(c)
        p.e(f"s_cbranch_vccz {ok}")
    p.e("s_mov_b32 s98, 0")
    p.e(f"{lp}:")
    p.e(load); p.e("s_waitcnt vmcnt(0)")
    for c in check: p.e(c)
    p.e(f"s_cbranch_vccz {ok}"); p.e(f"s_sleep {sleep}")
    p.e("s_add_u32 s98, s98, 1"); p.e("s_cmp_lt_u32 s98, 0x40000"); p.e(f"s_cbranch_scc1 {lp}")
    p.e(f"{ok}:"); p.e("s_nop 0")
    if first_tag is None: p.vm = []

def mbx_wait(p, load, vd, vlane4, val, first_tag=None, sleep=4):
    ok = newlabel("ok"); lp = newlabel("spin")
    chk = f"v_cmp_eq_u32 vcc, 0, {vd}"
    if first_tag is not None:
        p.wait_vm(first_tag); p.e(chk); p.e(f"s_cbranch_vccz {ok}")
    p.e("s_mov_b32 s98, 0")
    p.e(f"{lp}:")
    p.e(load); p.e("s_waitcnt vmcnt(0)"); p.e(chk); p.e(f"s_cbranch_vccz {ok}")
    p.e(f"s_sleep {sleep}")
    p.e("s_add_u32 s98, s98, 1"); p.e("s_cmp_gt_u32 s98, 0x40000"); p.e(f"s_cbranch_scc1 {ok}")
    p.e("s_and_b32 s32, s98, 31"); p.e(f"s_cbranch_scc1 {lp}")
    p.e(f"buffer_load_dword {vd}, {vlane4}, {R(R_DBG)}, 0 offen sc1"); p.e("s_waitcnt vmcnt(0)")
    p.e(f"v_cmp_gt_u32 vcc, {val}, {vd}"); p.e(f"s_cbranch_vccnz {lp}")
    p.e(f"{ok}:"); p.e("s_nop 0")
    if first_tag is None: p.vm = []

def mlp_role(p):
    O = OPT
    stamp_begin(p)
    p.e(f"""
    s_mul_i32 s88, s24, 43
    s_lshr_b32 s88, s88, 7
    s_mul_i32 s89, s88, 3
    s_sub_u32 s67, s24, s89                     ; q
    s_and_b32 s89, s23, 1
    s_mov_b32 s6, s89                           ; ma
    s_lshl_b32 s89, s89, 3
    s_add_u32 s66, s89, s88                     ; mt
    s_lshr_b32 s68, s23, 1                      ; kq
    s_lshl_b32 s69, s66, 2
    s_add_u32 s69, s69, s3                      ; ttile
    s_mul_i32 s71, s68, 3
    s_add_u32 s71, s71, s67                     ; ft
    s_lshl_b32 s5, s24, 2
    s_add_u32 s5, s5, s3
    s_add_u32 s88, s88, s67
    s_mul_i32 s89, s88, 43
    s_lshr_b32 s89, s89, 7
    s_mul_i32 s89, s89, 3
    s_sub_u32 s88, s88, s89
    {"" if O["rot"] else "s_mov_b32 s88, 0"}
    s_mov_b32 s7, s88                           ; rot
    s_mul_i32 s73, s69, 36864
    """)
    for t in range(3):
        p.e(f"s_mul_i32 s{91+t}, s88, {192*9216}")
        p.e(f"s_mul_i32 s{94+t}, s88, 384")
        p.e(f"s_add_u32 s{94+t}, s{94+t}, s73")
        if t < 2: p.e("s_add_u32 s88, s88, 1\ns_cmp_eq_u32 s88, 3\ns_cselect_b32 s88, 0, s88")
    p.e(f"""
    v_lshlrev_b32 v1, 4, v0
    v_lshrrev_b32 v20, 3, v0
    v_and_b32 v21, 7, v0
    v_lshrrev_b32 v22, 1, v20
    v_xor_b32 v22, v22, v21
    v_mul_u32_u24 v23, 1152, v20
    v_lshl_add_u32 v54, v22, 4, v23
    v_xor_b32 v22, 4, v22
    v_lshl_add_u32 v55, v22, 4, v23
    v_add_u32 v55, {8*1152-1024}, v55
    v_add_u32 v56, {16*1152-2048}, v54
    v_add_u32 v57, {16*1152-2048}, v55
    s_lshl_b32 s70, s3, 12
    s_add_u32 s70, s70, {XLDS}
    s_mul_i32 s72, s3, 6144
    v_bfe_u32 v22, v0, 4, 1
    v_lshlrev_b32 v22, 2, v22
    v_xor_b32 v21, v21, v22
    v_lshlrev_b32 v21, 4, v21
    v_mul_u32_u24 v2, 9216, v20
    v_add_u32 v2, v2, v21
    s_mul_i32 s89, s71, 768
    s_add_u32 s89, s89, 4096
    v_add_u32 v2, s89, v2
    s_mul_i32 s90, s3, 6
    """)
    for i in range(6):
        p.e(f"""
        s_add_u32 s88, s90, {i}
        s_and_b32 s89, s88, 7
        s_mul_i32 s89, s89, {8*9216}
        s_lshr_b32 s88, s88, 3
        s_lshl_b32 s88, s88, 7
        s_add_u32 s88, s88, s89
        s_sub_u32 s88, s88, {1024*(i%3)}
        v_add_u32 v{48+i}, s88, v2
        """)
    p.e("s_waitcnt lgkmcnt(0)")
    srd(p, R_X, P_X, SZ_X)
    srd(p, R_W1, P_W1, SZ_W+4096, -4096)

    g2 = [(0,s) for s in range(6)] + [(1,s) for s in range(3)] + [(2,s) for s in range(3)] + [(1,s) for s in range(3,6)] + [(2,s) for s in range(3,6)]
    slot_of = {}
    def dma(st, slot):
        slot_of[st] = slot
        base = slot*STG
        out = []
        for half in range(2):
            out.append(f"s_add_u32 m0, s72, {base + 3072*half}")
            if st < 9:
                if half == 0: out.append(f"s_add_u32 s35, s{91+st//3}, {64*(st%3)*9216}")
                vb, rr = 48+3*half, R_W1
            elif st < 18:
                out.append(f"s_add_u32 s35, s{91+st%3}, {24*half*9216 + 128*(st//3)}")
                vb, rr = 2, R_W1
            else:
                rel, sub = g2[st-18]
                out.append(f"s_add_u32 s35, s{78+rel}, {(64*sub+8*half)*1152}")
                vb, rr = 5, R_W2
            for i in range(3):
                out.append(f"buffer_load_dwordx4 v{vb+i}, {R(rr)}, s35 offen offset:{1024*i} lds")
        return [(t, ("w", st)) for t in out]
    def xsub(s): return (s+3) % 4
    def xdma(s):
        out = [f"s_add_u32 m0, s70, {16384*xsub(s)}", f"s_add_u32 s35, s{94+s//3}, {128*(s%3)}"]
        for rg in range(4): out.append(f"buffer_load_dwordx4 v{54+rg}, {R(R_X)}, s35 offen offset:{1024*rg} lds")
        return [(t, ("x", s)) for t in out]
    def xread(s):
        return [(f"ds_read_b128 {a(16*s+4*kk,4)}, v{58+kk} offset:{16384*xsub(s)}", ("xr", s, kk)) for kk in range(4)]
    def emit(t, tag):
        if t.startswith("buffer"): p.vmem(t, tag)
        elif t.startswith("ds_"): p.lds(t, tag)
        else: p.e(t)
    q1 = []
    for st in range(4):
        l = xdma(st) + dma(st, st)
        if st < O["npre"]:
            for t, tag in l: emit(t, tag)
        else: q1 += l
    p.e(f"""
    v_mov_b32 v62, v2
    s_mul_i32 s88, s3, {48*9216}
    v_add_u32 v2, s88, v2
    v_add_u32 v3, {8*9216-1024}, v2
    v_add_u32 v4, {16*9216-2048}, v2
    v_mul_u32_u24 v5, 1152, v20
    v_add_u32 v5, v5, v21
    s_mul_i32 s88, s3, {16*1152}
    s_mul_i32 s89, s67, 384
    s_add_u32 s88, s88, s89
    s_add_u32 s88, s88, 4096
    v_add_u32 v5, s88, v5
    v_subrev_u32 v6, {1024-128}, v5
    v_subrev_u32 v7, {2048-256}, v5
    v_and_b32 v20, 15, v0
    v_lshrrev_b32 v21, 2, v20
    v_lshlrev_b32 v21, 7, v21
    v_bfe_u32 v22, v0, 4, 1
    v_lshl_add_u32 v21, v22, 5, v21
    v_and_b32 v22, 3, v20
    v_lshl_add_u32 v21, v22, 3, v21
    v_lshrrev_b32 v22, 3, v20
    v_lshlrev_b32 v22, 6, v22
    v_xor_b32 v21, v21, v22
    v_lshrrev_b32 v22, 5, v0
    v_lshl_add_u32 v8, v22, 10, v21
    v_lshl_add_u32 v14, v22, 9, v21
    v_xor_b32 v9, 64, v8
    v_xor_b32 v15, 64, v14
    v_add_u32 v10, {2*STG}, v8
    v_add_u32 v11, {2*STG}, v9
    v_add_u32 v12, {4*STG}, v8
    v_add_u32 v13, {4*STG}, v9
    v_add_u32 v16, {2*STG}, v14
    v_add_u32 v17, {2*STG}, v15
    v_add_u32 v18, {4*STG}, v14
    v_add_u32 v19, {4*STG}, v15
    v_and_b32 v20, 31, v0
    v_bfe_u32 v21, v0, 1, 3
    v_xor_b32 v21, v21, v22
    v_lshlrev_b32 v23, 7, v20
    v_add_u32 v23, s70, v23
    v_lshl_add_u32 v58, v21, 4, v23
    v_xor_b32 v59, 32, v58
    v_xor_b32 v60, 64, v58
    v_xor_b32 v61, 96, v58
    v_mov_b32 v240, 0
    v_mul_u32_u24 v242, 1152, v20
    v_lshl_add_u32 v242, v22, 4, v242
    v_lshlrev_b32 v241, 7, v0
    v_lshlrev_b32 v253, 2, v20
    v_lshlrev_b32 v254, 2, v0
    s_mul_i32 s74, s69, {288*1024}
    s_mul_i32 s88, s68, {72*1024}
    s_add_u32 s74, s74, s88
    s_add_u32 s74, s74, {HF}
    s_add_u32 s88, s67, 1
    s_cmp_eq_u32 s88, 3
    s_cselect_b32 s88, 0, s88
    s_add_u32 s89, s88, 1
    s_cmp_eq_u32 s89, 3
    s_cselect_b32 s89, 0, s89
    s_mul_i32 s75, s67, {24*1024}
    s_add_u32 s75, s75, s74
    s_mul_i32 s76, s88, {24*1024}
    s_add_u32 s76, s76, s74
    s_mul_i32 s77, s89, {24*1024}
    s_add_u32 s77, s77, s74
    s_mul_i32 s90, s68, {1152*1152}
    s_mul_i32 s78, s67, {384*1152}
    s_add_u32 s78, s78, s90
    s_mul_i32 s79, s88, {384*1152}
    s_add_u32 s79, s79, s90
    s_mul_i32 s80, s89, {384*1152}
    s_add_u32 s80, s80, s90
    s_lshl_b32 s81, s69, 10
    s_add_u32 s81, s81, {MB}
    s_lshl_b32 s88, s68, 7
    s_add_u32 s82, s81, s88
    s_lshl_b32 s88, s67, 2
    s_add_u32 s83, s82, s88
    s_lshl_b32 s88, s67, 7
    s_add_u32 s84, s81, s88
    s_add_u32 s84, s84, 512
    s_lshl_b32 s88, s68, 2
    s_add_u32 s85, s84, s88
    s_mul_i32 s86, s69, 3
    s_add_u32 s86, s86, s67
    s_mul_i32 s86, s86, {16*3072}
    s_add_u32 s86, s86, {PX}
    s_mul_i32 s88, s67, 384
    s_add_u32 s87, s73, s88
    s_mul_i32 s88, s68, 96
    s_add_u32 s87, s87, s88
    s_lshl_b32 s97, s69, 7
    s_add_u32 s97, s97, {NM}
    s_mul_i32 s81, s5, {108*128}
    s_add_u32 s81, s81, s90
    s_add_u32 s81, s81, 4096
    v_min_u32 v20, 53, v0
    v_mul_u32_u24 v21, 57, v20
    v_lshrrev_b32 v21, 9, v21
    v_mul_u32_u24 v22, 9, v21
    v_sub_u32 v22, v20, v22
    v_mul_u32_u24 v21, 9216, v21
    v_lshl_add_u32 v63, v22, 7, v21
    v_lshlrev_b32 v251, 7, v20
    s_mul_i32 s74, s5, {6*9216}
    s_mul_i32 s88, s68, 2304
    s_add_u32 s74, s74, s88
    s_xor_b32 s88, s6, 1
    s_mul_i32 s88, s88, 1152
    s_add_u32 s74, s74, s88
    s_add_u32 s74, s74, 4096
    """)
    srd(p, R_W2, P_W2, SZ_W+4096, -4096)
    srd(p, R_WS, P_WS, WSSZ)
    srd(p, R_OUT, P_OUT, SZ_X)
    srd(p, R_DBG, P_DBG, 256)
    p.e(f"""
    s_lshl_b32 s4, s2, 8
    s_add_u32 s4, s4, {MBX}
    v_min_u32 v249, 19, v0
    v_lshlrev_b32 v249, 2, v249
    s_lshl_b32 s88, s67, 2
    s_add_u32 s88, s88, s68
    s_lshl_b32 s89, s7, 2
    s_sub_u32 s6, s88, s89
    s_add_u32 s89, s6, 12
    s_cmp_lt_i32 s6, 0
    s_cselect_b32 s6, s89, s6
    s_mul_i32 s88, s88, 48
    s_mul_i32 s89, s88, 7282
    s_lshr_b32 s89, s89, 16
    s_add_u32 s88, s88, 47
    s_mul_i32 s88, s88, 7282
    s_lshr_b32 s88, s88, 16
    s_sub_u32 s88, s88, s89
    v_min_u32 v250, s88, v0
    v_lshlrev_b32 v250, 2, v250
    """)
    p.vmem(f"buffer_store_dword v240, v254, {R(R_WS)}, s4 offen sc1", "clr")

    NF = 6; PF = 4; FR = 24; HO = 48; ACC = 144
    e0 = O["e0"]
    chunk_acc = {0: 144, 1: 176, 2: 208, 3: HO+64, 4: 144, 5: 176}
    seq = []
    sync_at = {}
    for st in range(36):
        if st < 9 or st > 18: order = [(kk, tt) for kk in range(4) for tt in range(6)]
        elif st == 18: order = [(kk, tt) for kk in range(4) for tt in (0,1,4,5)] + [(kk, tt) for kk in range(4) for tt in (2,3)]
        else: order = [(kk, tt) for kk in range(12) for tt in range(2)]
        if st == e0: order = [("a", (c, t)) for c in range(3) for t in range(2)] + order
        if st in (11, 13, 16): order = order[:2] + [("a", (st//3, t)) for t in range(2)] + order[2:]
        seq += [(st, kk, tt) for kk, tt in order]
        sync_at[len(seq) - PF - 2] = st
    stage_start = {}
    for m, (st, _, _) in enumerate(seq): stage_start.setdefault(st, m)
    def fread(m):
        st, kk, tt = seq[m]
        r = FR + 4*(m % NF)
        if kk == "a":
            base = 12 + tt[1]; off = 2*STG + tt[0]*2048; d2 = 512
        else:
            slot = slot_of[st]
            if st < 9: base = 8 + 2*(slot//2) + (tt&1); off = (slot%2)*STG + ((tt>>1)*8 + 2*kk)*1024; d2 = 512
            elif st < 18: base = 8 + 2*(slot//2) + tt; off = (slot%2)*STG + kk*2048; d2 = 512
            else: base = 14 + 2*(slot//2) + (tt&1); off = (slot%2)*STG + ((2*kk)*3 + (tt>>1))*1024; d2 = 3072
        p.lds(f"ds_read_b64_tr_b16 {v(r,2)}, v{base} offset:{off}", m)
        p.lds(f"ds_read_b64_tr_b16 {v(r+2,2)}, v{base} offset:{off+d2}", m)
    def epilogue1(ch):
        out = [(f"s_add_u32 s34, s75, {4096*ch}", None)]
        for qq in range(4):
            src = chunk_acc[ch] + 8*qq; dst = HO + 16*ch + 4*qq
            for j in range(4): out.append((f"v_cvt_pk_bf16_f32 v{dst+j}, v{src+2*j}, v{src+2*j+1}", ("E", ch)))
            for j in range(4): out.append((f"v_pk_max_i16 v{dst+j}, v{dst+j}, 0", ("E", ch)))
            out.append((f"buffer_store_dwordx4 {v(dst,4)}, v1, {R(R_WS)}, s34 offen offset:{1024*qq}" + (" sc1" if O["hsc1"] else ""), ("hst", ch)))
        return out
    def hreg(st, kk):
        rel, sub = g2[st-18]
        if rel == 0: return v(HO + 16*sub + 4*kk, 4)
        base = {(1,0):144, (2,0):192, (1,1):0, (2,1):48}[(rel, sub//3)]
        return a(base + 16*(sub%3) + 4*kk, 4)
    def hloads(half):
        out = []
        for rel in (1, 2):
            for s3 in range(3):
                sub = 3*half + s3; st = 18 + g2.index((rel, sub))
                out.append((f"s_add_u32 s33, s{75+rel}, {4096*sub}", None))
                for kk in range(4):
                    out.append((f"buffer_load_dwordx4 {hreg(st,kk)}, v1, {R(R_WS)}, s33 offen offset:{1024*kk} sc1", ("hp", st)))
        return out
    hflag_load = f"buffer_load_dwordx4 v[20:23], v240, {R(R_WS)}, s82 offen sc1"
    def hflag_check(val): return ["v_min_u32 v20, v20, v21", "v_min_u32 v20, v20, v22", f"v_cmp_gt_u32 vcc, {val}, v20"]
    mbA = f"buffer_load_dword v248, v249, {R(R_WS)}, s4 offen sc1"
    mbC = f"buffer_load_dword v248, v250, {R(R_WS)}, s4 offen offset:128 sc1"
    stamp(p)
    p.wait_vm(("w", 0))
    for t, tag in xread(0): emit(t, tag)
    p.e("s_barrier")
    stamp(p)
    for m in range(PF): fread(m)
    q2 = []; q3 = []
    started = set()
    free = []; nextw = 4
    for m, (st, kk, tt) in enumerate(seq):
        loc = m - stage_start[st]
        if m in sync_at and st < 35:
            if st == 0:
                while q1 and q1[0][1] in (("x",1),("w",1)): emit(*q1.pop(0))
            assert not any(tag in (("w",st+1),("x",st+1),("hp",st+1)) for _,tag in q1+q3), (st, q1, q3)
            p.wait_vm(("w", st+1)); p.wait_vm(("x", st+1)); p.wait_vm(("hp", st+1))
            if st == O["poll1"]: p.wait_vm("clr")
            if st+1 == e0:
                p.wait_vm("cs")
                p.e("v_mov_b32 v245, v244\nv_mov_b32 v246, v244\nv_mov_b32 v247, v244")
            if st in (O["hf1"], O["hf2"]):
                half = 0 if st == O["hf1"] else 1
                assert not any(tag == ("hst", 3*half+2) for _,tag in q2)
                p.wait_vm(("hst", 3*half+2))
                p.e(f"v_mov_b32 v243, {half+1}")
                p.vmem(f"buffer_store_dword v243, v240, {R(R_WS)}, s83 offen sc1", "flag")
                if O["rb"]:
                    p.e(f"s_add_u32 s33, s75, {12288*half}")
                    p.vmem(f"buffer_load_dword a252, v241, {R(R_WS)}, s33 offen", "rb")
                    p.e(f"s_add_u32 s33, s75, {12288*half+4096}")
                    p.vmem(f"buffer_load_dword a253, v241, {R(R_WS)}, s33 offen", "rb")
            if st == 8:
                mbx_wait(p, mbA, "v248", "v254", 1, "poll")
            if st in (O["hc1"], O["hc2"]):
                spin_until(p, hflag_load, hflag_check(1 if st == O["hc1"] else 2), "poll")
                q3 += hloads(0 if st == O["hc1"] else 1)
            p.e("s_barrier")
            stamp(p)
            if st == 8:
                assert not q1 or q1[0][0].startswith("s_add_u32 m0"), q1[0]
                p.vmem(f"buffer_load_dword v244, v253, {R(R_WS)}, s97 offen sc1", "cs")
                for i in range(3):
                    p.e(f"""
                    s_mul_i32 s88, s3, 3
                    s_add_u32 s88, s88, {i}
                    s_lshl_b32 s89, s88, 10
                    s_add_u32 m0, s89, {YLDS}
                    s_and_b32 s89, s88, 1
                    s_mul_i32 s89, s89, {8*9216}
                    s_lshr_b32 s88, s88, 1
                    s_lshl_b32 s88, s88, 7
                    s_add_u32 s88, s88, s89
                    s_add_u32 s88, s88, {CS-4096}
                    """)
                    p.vmem(f"buffer_load_dwordx4 v62, {R(R_WS)}, s88 offen sc1 lds", "cs")
                p.e(f"s_add_u32 s33, s97, {RI-NM}")
                p.vmem(f"buffer_load_dword v252, v253, {R(R_WS)}, s33 offen sc1", "ri")
            if st+1 <= 8: q1 = xread(st+1) + q1
            if st == O["poll1"]: p.vmem(mbA, "poll")
            if st in (O["hp1"], O["hp2"]): p.vmem(hflag_load, "poll")
            if st == 33: p.vmem(mbC, "poll2")
            if st == O["t1"]: p.vmem(f"buffer_load_dword a252, v63, {R(R_W1)}, s74 offen", "touch")
            if st == O["t2"]:
                p.vmem(f"buffer_load_dword a253, v251, {R(R_W2)}, s81 offen", "touch")
                p.e(f"s_add_u32 s81, s81, {54*128}")
                p.vmem(f"buffer_load_dword a254, v251, {R(R_W2)}, s81 offen", "touch")
            if st == 20:
                done = newlabel("xr")
                for g in range(12):
                    nx = newlabel("xn")
                    if g < 11: p.e(f"s_cmp_lg_u32 s6, {g}\ns_cbranch_scc1 {nx}")
                    for j in range(12): p.e(f"v_accvgpr_mov_b32 a{240+j}, a{12*g+j}")
                    if g < 11: p.e(f"s_branch {done}"); p.e(f"{nx}:")
                p.e(f"{done}:")
            if st >= 1: free.append(slot_of[st-1])
            if st == 6: free.append(4)
            if st == 7: free.append(5)
            if st+4 <= 8: q1 += xdma(st+4)
            while free and nextw < 36:
                q1 += dma(nextw, free.pop(0)); nextw += 1
        if m % 2 == 0: p.wait_lg(m+1)
        if kk == "a":
            acc = chunk_acc[tt[0]] + 16*tt[1]; bop = "v[244:247]"; key = None
        elif st < 9:
            acc = ACC + 16*tt; bop = a(16*st+4*kk, 4); key = ("h0", tt)
            if tt == 0:
                assert not any(tag == ("xr", st, kk) for _,tag in q1), (st, kk)
                p.wait_lg(("xr", st, kk))
        elif st < 18:
            acc = chunk_acc[st//3] + 16*tt; bop = a(4*(12*(st%3)+kk), 4); key = ("c", st//3, tt)
            if key not in started and st//3 >= 4: assert not any(tag == ("E", st//3-4) for _,tag in q2)
        else:
            acc = ACC + 16*tt; bop = hreg(st, kk); key = ("g2", tt)
            if key not in started: assert not any(tag == ("E", {0:4,1:5,2:2}[tt>>1]) for _,tag in q2), (tt, q2)
        cop = v(acc,16) if (key is None or key in started) else "0"
        started.add(key)
        p.e(f"v_mfma_f32_32x32x16_bf16 {v(acc,16)}, {v(FR+4*(m%NF),4)}, {bop}, {cop}")
        if m+PF < len(seq): fread(m+PF)
        if loc == 4 and st == e0: q2 += epilogue1(0) + epilogue1(1) + epilogue1(2)
        if loc == 3 and st in (12, 15, 18): q2 += epilogue1(st//3 - 1)
        budget = O["bud"]
        if st == 18: budget += 2
        n1 = 2 if (st < 9 and len(q1) > 10) else 1
        while q1 and n1 > 0:
            emit(*q1.pop(0)); budget -= 1; n1 -= 1
        if q3 and m % O["hpace"] == 0:
            t, tag = q3.pop(0); emit(t, tag); budget -= 1
            if not t.startswith("buffer"): emit(*q3.pop(0)); budget -= 1
        while budget > 0 and q2:
            t, tag = q2.pop(0); emit(t, tag); budget -= 1
            if t.startswith("buffer"): break
    assert not q1 and not q2 and not q3
    stamp(p)
    OWN = 48; TMP = 72
    for g in range(4):
        l_own = newlabel("own"); l_nx = newlabel("nx")
        p.e(f"s_cmp_eq_u32 s68, {g}"); p.e(f"s_cbranch_scc1 {l_own}")
        p.e(f"s_mul_i32 s33, s68, 3072\ns_add_u32 s33, s33, s86\ns_add_u32 s33, s33, {g*4*3072}")
        for pr in range(3):
            src = ACC + 24*g + 8*pr; dst = TMP + 12*g + 4*pr
            for j in range(4): p.e(f"v_cvt_pk_bf16_f32 v{dst+j}, v{src+2*j}, v{src+2*j+1}")
            p.e(f"buffer_store_dwordx4 {v(dst,4)}, v1, {R(R_WS)}, s33 offen offset:{1024*pr} sc1")
        p.e(f"s_branch {l_nx}"); p.e(f"{l_own}:"); p.e("s_nop 7"); p.e("s_nop 3")
        for j in range(24): p.e(f"v_mov_b32 v{OWN+j}, v{ACC+24*g+j}")
        p.e(f"{l_nx}:")
    p.vm += ["pst"]*9
    stamp(p)
    p.e(f"""
    v_lshrrev_b32 v20, 2, v0
    v_lshlrev_b32 v20, 12, v20
    v_and_b32 v21, 3, v0
    v_lshl_add_u32 v24, v21, 4, v20
    s_mul_i32 s33, s67, 192
    s_mul_i32 s34, s68, 48
    s_add_u32 s33, s33, s34
    s_lshl_b32 s33, s33, 12
    s_lshl_b32 s34, s69, 6
    s_add_u32 s33, s33, s34
    s_add_u32 s33, s33, {YT}
    s_mul_i32 s34, s3, 3072
    s_add_u32 s34, s34, {YLDS}
    v_and_b32 v20, 15, v0
    v_lshrrev_b32 v21, 2, v20
    v_lshlrev_b32 v21, 6, v21
    v_lshrrev_b32 v22, 5, v0
    v_lshl_add_u32 v21, v22, 9, v21
    v_bfe_u32 v22, v0, 4, 1
    v_lshl_add_u32 v21, v22, 5, v21
    v_and_b32 v22, 3, v20
    v_lshl_add_u32 v21, v22, 3, v21
    v_add_u32 v25, s34, v21
    v_mov_b32 v243, 1
    """)
    YR = 120; XR = 132; B = 184
    for j in range(12): p.e(f"v_accvgpr_read_b32 v{XR+j}, a{240+j}")
    p.wait_vm("pst")
    p.vmem(f"buffer_store_dword v243, v240, {R(R_WS)}, s85 offen sc1", "flag")
    stamp(p)
    p.vm = ["poll2"] + p.vm
    mbx_wait(p, mbC, "v248", "v254", 3, "poll2")
    for i in range(3):
        p.e(f"s_add_u32 m0, s34, {1024*i}"); p.e(f"s_add_u32 s35, s33, {16*4096*i}")
        p.vmem(f"buffer_load_dwordx4 v24, {R(R_WS)}, s35 offen sc1 lds", "y")
    stamp(p)
    spin_until(p, f"buffer_load_dwordx4 v[20:23], v240, {R(R_WS)}, s84 offen sc1",
               ["v_min_u32 v20, v20, v21", "v_min_u32 v22, v22, v23", "v_min_u32 v20, v20, v22", "v_cmp_eq_u32 vcc, 0, v20"], None, sleep=1)
    stamp(p)
    p.e(f"s_mul_i32 s33, s68, {4*3072}\ns_add_u32 s33, s33, s86")
    for k in range(1, 4):
        p.e(f"s_add_u32 s88, s68, {k}\ns_and_b32 s88, s88, 3\ns_mul_i32 s88, s88, 3072\ns_add_u32 s88, s88, s33")
        for pr in range(3):
            p.vmem(f"buffer_load_dwordx4 {v(144+12*(k-1)+4*pr,4)}, v1, {R(R_WS)}, s88 offen offset:{1024*pr} sc1", ("pl", k))
    for pr in range(3):
        p.lds(f"ds_read_b64_tr_b16 {v(YR+4*pr,2)}, v25 offset:{1024*pr}")
        p.lds(f"ds_read_b64_tr_b16 {v(YR+4*pr+2,2)}, v25 offset:{1024*pr+256}")
    p.wait_lg_all()
    for j in range(12):
        p.e(f"""
        v_lshlrev_b32 v22, 16, v{XR+j}
        v_and_b32 v23, 0xffff0000, v{XR+j}
        v_lshlrev_b32 v{B+2*j}, 16, v{YR+j}
        v_and_b32 v{B+2*j+1}, 0xffff0000, v{YR+j}
        v_pk_add_f32 v[22:23], v[22:23], {v(B+2*j,2)}
        v_cvt_pk_bf16_f32 v22, v22, v23
        v_lshlrev_b32 v{B+2*j}, 16, v22
        v_and_b32 v{B+2*j+1}, 0xffff0000, v22
        """)
    for k in range(1, 4):
        p.wait_vm(("pl", k))
        for j in range(12):
            r = 144+12*(k-1)+j
            p.e(f"v_lshlrev_b32 v22, 16, v{r}\nv_and_b32 v23, 0xffff0000, v{r}\nv_pk_add_f32 {v(OWN+2*j,2)}, {v(OWN+2*j,2)}, v[22:23]")
    Oo = 72
    for pr in range(3):
        r = Oo + 4*pr
        for j in range(4):
            p.e(f"v_pk_mul_f32 v[22:23], {v(OWN+8*pr+2*j,2)}, v[252:253] op_sel_hi:[1,0]\nv_cvt_pk_bf16_f32 v{r+j}, v22, v23")
        p.e(f"v_permlane32_swap_b32 v{r}, v{r+2}"); p.e(f"v_permlane32_swap_b32 v{r+1}, v{r+3}")
        for j in range(4):
            p.e(f"""
            v_lshlrev_b32 v22, 16, v{r+j}
            v_and_b32 v23, 0xffff0000, v{r+j}
            v_pk_add_f32 v[22:23], v[22:23], {v(B+8*pr+2*j,2)}
            v_cvt_pk_bf16_f32 v{r+j}, v22, v23
            """)
        p.vmem(f"buffer_store_dwordx4 {v(r,4)}, v242, {R(R_OUT)}, s87 offen offset:{32*pr}")
    stamp_end(p)
    p.e("s_endpgm")

LN_PITCH = 1168
UP = 4592; UBASE = 0; WBASE = 41344
TPL = 264
ZOFF = 7*TPL + 768
TABSZ = 2688; CPS = 4160; CPSZ = 16896
CP = 3*TABSZ
WSZ = CP + CPSZ
CP9 = WBASE + 4*WSZ
KP = 528
assert CP9 + 4*CPS + 16 <= LDS_BYTES and ZOFF + 4 <= TABSZ
def ssm_role(p):
    O = OPT
    p.vm = []; p.lg = []
    stamp_begin(p, True)
    X = 156; F = 48; PR = 192; GA = 210
    FLG = CP9 + 4*CPS
    p.e(f"""
    s_sub_u32 s83, s24, 24               ; rg
    s_mov_b32 s84, s23
    s_lshl_b32 s66, s83, 3
    s_add_u32 s66, s66, s23
    s_mul_i32 s67, s3, {WSZ}
    s_add_u32 s67, s67, {WBASE}
    s_mul_i32 s68, s66, 9
    v_lshlrev_b32 v1, 4, v0
    v_lshrrev_b32 v28, 3, v0
    v_and_b32 v29, 7, v0
    v_mul_u32_u24 v32, 9216, v28
    v_lshl_add_u32 v32, v29, 4, v32
    s_lshl_b32 s25, s3, 3
    v_add_u32 v28, s25, v28
    v_mul_u32_u24 v30, 1152, v28
    v_lshl_add_u32 v30, v29, 4, v30
    s_mul_i32 s69, s66, 36864
    v_mov_b32 v24, 0
    v_mov_b32 v25, 0
    v_mov_b32 v26, 0
    v_mov_b32 v27, 0
    v_lshlrev_b32 v254, 2, v0
    """)
    if O["codepf"]:
        p.e(f"""
        s_getpc_b64 s[12:13]
        L_pc:
        s_sub_u32 s12, s12, L_pc-{KNAME}
        s_subb_u32 s13, s13, 0
        s_mov_b32 s14, L_code_end-{KNAME}
        s_mov_b32 s15, 0x00020000
        s_lshl_b32 s25, s83, 2
        s_add_u32 s25, s25, s3
        s_lshl_b32 s25, s25, 11
        v_and_b32 v6, 15, v0
        v_lshlrev_b32 v6, 7, v6
        """)
        p.vmem("buffer_load_dword a200, v6, s[12:15], s25 offen", "touch")
    p.e("s_waitcnt lgkmcnt(0)")
    srd(p, R_X, P_X, SZ_X)
    for i in range(9):
        p.vmem(f"buffer_load_dwordx4 {v(X+4*i,4)}, v30, {R(R_X)}, s69 offen offset:{128*i}", "x")
    srd(p, R_W1, P_W1, SZ_W)
    p.e(f"""
    s_lshr_b32 s25, s84, 1
    s_mul_i32 s25, s25, 18
    s_and_b32 s26, s84, 1
    s_mul_i32 s27, s26, 9
    s_add_u32 s85, s25, s27
    s_xor_b32 s26, s26, 1
    s_mul_i32 s27, s26, 9
    s_add_u32 s88, s25, s27
    s_min_u32 s26, s3, 2
    s_mul_i32 s26, s26, 3
    s_add_u32 s85, s85, s26
    s_cmp_eq_u32 s3, 2
    s_cselect_b32 s85, s88, s85
    s_mul_i32 s87, s83, {72*9216}
    s_lshl_b32 s89, s85, 7
    s_add_u32 s89, s89, s87
    """)
    def wbatch(bi):
        for i in range(3*bi, 3*bi+3):
            if i: p.e(f"s_add_u32 s89, s89, {8*9216}")
            for c in range(3):
                p.vmem(f"buffer_load_dwordx4 {a(36*c+4*i,4)}, v32, {R(R_W1)}, s89 offen offset:{128*c}", "wc")
    wbatch(0)
    srd(p, R_WS, P_WS, WSSZ)
    srd(p, R_DBG, P_DBG, 256)
    p.e(f"""
    s_add_u32 s70, s68, s3
    s_add_u32 s71, s70, 4
    s_add_u32 s72, s68, 8
    s_cmp_eq_u32 s3, 2
    s_cselect_b32 s90, s72, s70
    s_cselect_b32 s91, s70, s71
    s_mov_b32 s92, s71
    """)
    for c in range(3):
        p.e(f"""
        s_lshl_b32 s25, s{90+c}, 1
        s_and_b32 s25, s25, 0xfffffffc
        s_add_u32 s26, s{P_LOGDT}, s25
        s_addc_u32 s27, s{P_LOGDT+1}, 0
        s_load_dword s{74+c}, s[26:27], 0
        s_add_u32 s26, s{P_D}, s25
        s_addc_u32 s27, s{P_D+1}, 0
        s_load_dword s{77+c}, s[26:27], 0
        """)
    stamp(p)
    p.e(f"v_and_b32 v20, 15, v0\nv_lshrrev_b32 v21, 4, v0\nv_lshlrev_b32 v8, 3, v0\nv_mov_b32 v9, {ZOFF}\nv_mov_b32 v10, {TPL}")
    def gaddrs(it):
        for k in range(11):
            c = 2047 - 512*it - k; g = GA + 11*it + k
            p.e(f"v_sub_u32 v{g}, {c}, v8")
            if it == 3 and k >= 8: p.e(f"v_cmp_gt_i32 vcc, 0, v{g}")
            p.e(f"v_cvt_f32_i32 v{g}, v{g}\nv_cvt_pk_bf16_f32 v{g}, v{g}, v{g}\nv_lshlrev_b32 v{g}, 16, v{g}\nv_cvt_i32_f32 v{g}, v{g}")
            p.e(f"v_add_u32 v11, 7, v{g}\nv_and_b32 v11, 7, v11\nv_lshrrev_b32 v{g}, 3, v{g}\nv_lshl_add_u32 v{g}, v{g}, 1, s67\nv_mad_u32_u24 v{g}, v11, v10, v{g}")
            if it == 3 and k >= 8: p.e(f"v_add_u32 v11, s67, v9\nv_cndmask_b32 v{g}, v{g}, v11, vcc")
    for it in range(4): gaddrs(it)
    p.e(f"""
    s_cmp_eq_u32 s3, 2
    s_cselect_b32 s93, {WSZ+2*TABSZ}, 0
    s_add_u32 s25, s67, s93
    v_lshl_add_u32 v7, v20, 1, s25
    v_and_b32 v4, 1, v21
    v_lshrrev_b32 v5, 1, v21
    v_mul_u32_u24 v12, {4*TPL}, v4
    v_lshl_add_u32 v6, v5, 5, v7
    v_add_u32 v12, v12, v6
    v_mul_u32_u24 v3, {4*TPL}, v4
    v_sub_u32 v3, {7*TPL}, v3
    v_add_u32 v3, v3, v6
    v_lshlrev_b32 v8, 5, v21
    v_add_u32 v8, 64, v8
    v_lshlrev_b32 v9, 6, v21
    v_cmp_gt_u32 vcc, 2, v21
    v_cndmask_b32 v8, v9, v8, vcc
    v_add_u32 v8, v8, v7
    v_add_u32 v13, {7*TPL}, v8
    v_mov_b32 v9, {1*TPL}
    v_mov_b32 v10, {3*TPL}
    v_cndmask_b32 v6, v10, v9, vcc
    v_add_u32 v14, v6, v8
    v_mov_b32 v9, {7*TPL+32}
    v_cndmask_b32 v6, v9, v10, vcc
    v_add_u32 v15, v6, v8
    v_mov_b32 v9, {3*TPL+32}
    v_mov_b32 v10, {5*TPL}
    v_cndmask_b32 v6, v9, v10, vcc
    v_add_u32 v16, v6, v8
    v_lshl_add_u32 v17, v21, 7, v7
    v_mov_b32 v9, s25
    s_sub_u32 s93, 0, s93
    s_cmp_eq_u32 s3, 2
    s_cselect_b32 s93, s93, {TABSZ}
    v_lshl_add_u32 v10, v0, 3, s67
    v_mul_u32_u24 v11, {KP}, v20
    v_lshl_add_u32 v11, v4, 8, v11
    v_lshl_add_u32 v11, v5, 7, v11
    v_add_u32 v11, s67, v11
    v_add_u32 v18, s67, v1
    v_lshl_add_u32 v4, v21, 3, v20
    v_sub_u32 v4, 39, v4
    v_and_b32 v5, 3, v4
    v_mul_u32_u24 v5, {CPS}, v5
    v_lshrrev_b32 v4, 2, v4
    v_lshl_add_u32 v19, v4, 3, v5
    v_lshlrev_b32 v5, 5, v20
    v_lshlrev_b32 v6, 4, v21
    v_sub_u32 v22, v5, v6
    v_add_u32 v22, 48, v22
    v_lshl_add_u32 v23, v21, 3, v5
    v_bfe_u32 v4, v0, 2, 2
    v_mul_u32_u24 v4, {CPS}, v4
    v_and_b32 v5, 3, v0
    v_lshl_add_u32 v4, v5, 4, v4
    v_add_u32 v2, s67, v4
    """)
    wbatch(1)
    p.e(f"s_lshl_b32 s25, s66, 10\ns_add_u32 s25, s25, {MB}\ns_lshl_b32 s4, s2, 8\ns_add_u32 s4, s4, {MBX}\ns_mov_b32 s5, {MBX}")
    p.vmem(f"buffer_store_dword v24, v254, {R(R_WS)}, s4 offen sc1", "mb")
    p.vmem(f"buffer_store_dwordx4 v[24:27], v1, {R(R_WS)}, s25 offen sc1", "mb")
    p.e(f"""
    v_lshrrev_b32 v149, 1, v0
    v_lshlrev_b32 v149, 3, v149
    v_and_b32 v150, 1, v0
    v_add_u32 v149, v149, v150
    s_and_b32 s25, s84, 6
    v_add_u32 v149, s25, v149
    v_lshlrev_b32 v149, 8, v149
    s_and_b32 s25, s84, 1
    s_lshl_b32 s25, s25, 3
    s_add_u32 s25, s25, s83
    s_lshl_b32 s25, s25, 2
    v_add_u32 v149, s25, v149
    v_min_u32 v150, 59, v0
    v_subrev_u32 v150, 48, v150
    v_and_b32 v151, 3, v150
    v_lshlrev_b32 v151, 1, v151
    v_lshrrev_b32 v150, 2, v150
    v_lshl_add_u32 v150, v150, 3, v151
    s_lshr_b32 s25, s66, 2
    s_and_b32 s26, s25, 7
    s_mul_i32 s26, s26, 24
    s_lshr_b32 s25, s25, 3
    s_add_u32 s25, s25, s26
    v_add_u32 v150, s25, v150
    v_lshlrev_b32 v150, 8, v150
    s_and_b32 s25, s66, 3
    s_lshl_b32 s25, s25, 2
    s_add_u32 s25, s25, 64
    v_add_u32 v150, s25, v150
    v_cmp_gt_u32 vcc, 48, v0
    v_cndmask_b32 v149, v150, v149, vcc
    v_mov_b32 v122, 0x3f80
    v_mov_b32 v123, 0x3f800000
    """)
    SEL = 128
    for jj in range(4):
        p.e(f"v_cmp_eq_u32 vcc, {2*jj}, v20\nv_cndmask_b32 v{SEL+jj}, 0, v122, vcc\nv_cmp_eq_u32 vcc, {2*jj+1}, v20\nv_cndmask_b32 v{SEL+jj}, v{SEL+jj}, v123, vcc")
    p.e(f"""
    v_and_b32 v132, 7, v20
    v_lshlrev_b32 v132, 4, v132
    v_lshl_add_u32 v132, v21, 3, v132
    v_lshrrev_b32 v133, 3, v20
    v_mul_u32_u24 v133, 9216, v133
    v_add_u32 v132, v132, v133
    s_mul_i32 s96, s83, {2*9216}
    s_lshl_b32 s25, s85, 7
    s_add_u32 s96, s96, s25
    s_add_u32 s96, s96, {CS}
    v_cmp_lt_u32 s[94:95], 7, v20
    v_lshlrev_b32 v127, 2, v28
    s_lshl_b32 s86, s66, 7
    s_add_u32 s86, s86, {NM}
    v_mul_u32_u24 v30, {LN_PITCH}, v28
    v_lshl_add_u32 v30, v29, 4, v30
    v_and_b32 v31, 31, v0
    v_mul_u32_u24 v31, {LN_PITCH}, v31
    v_lshrrev_b32 v4, 5, v0
    v_lshl_add_u32 v31, v4, 4, v31
    s_mul_i32 s25, s3, {9*32}
    v_add_u32 v31, s25, v31
    ; touch lane offsets: v8 = min(l,53)*128 ; v33 = w1: (l/6)*9216 + (l%6)*128
    v_min_u32 v4, 53, v0
    v_lshlrev_b32 v8, 7, v4
    v_mul_u32_u24 v5, 43, v4
    v_lshrrev_b32 v5, 8, v5
    v_mul_u32_u24 v6, 6, v5
    v_sub_u32 v6, v4, v6
    v_mul_u32_u24 v5, 9216, v5
    v_lshl_add_u32 v33, v6, 7, v5
    v_mov_b32 v4, {FLG}
    ds_write_b32 v4, v24
    v_mov_b32 v6, 0
    v_mov_b32 v7, 0
    s_waitcnt lgkmcnt(0)
    """)
    for c in range(3):
        p.e(f"""
        s_and_b32 s25, s{90+c}, 1
        s_lshl_b32 s25, s25, 4
        s_lshr_b32 s{74+c}, s{74+c}, s25
        s_lshl_b32 s{74+c}, s{74+c}, 16
        s_lshr_b32 s{77+c}, s{77+c}, s25
        s_lshl_b32 s{77+c}, s{77+c}, 16
        """)
    stamp(p)
    p.wait_vm("x")
    for i in range(9):
        for j in range(4):
            r = X+4*i+j; f = F+8*i+2*j
            p.e(f"v_lshlrev_b32 v{f}, 16, v{r}\nv_and_b32 v{f+1}, 0xffff0000, v{r}\nv_pk_add_f32 v[6:7], v[6:7], {v(f,2)}")
    wbatch(2)
    def red8(r):
        p.e(f"v_add_f32_dpp v{r}, v{r}, v{r} quad_perm:[1,0,3,2] row_mask:0xf bank_mask:0xf")
        p.e(f"v_add_f32_dpp v{r}, v{r}, v{r} quad_perm:[2,3,0,1] row_mask:0xf bank_mask:0xf")
        p.e(f"v_add_f32_dpp v{r}, v{r}, v{r} row_half_mirror row_mask:0xf bank_mask:0xf")
    p.e("v_add_f32 v6, v6, v7"); red8(6)
    p.e(f"v_mul_f32 v6, {f32(1.0/576)}, v6\nv_cvt_pk_bf16_f32 v44, v6, v6\nv_xor_b32 v126, 0x80008000, v44")
    p.e("v_lshlrev_b32 v44, 16, v44\nv_sub_f32 v6, v6, v44\nv_mov_b32 v46, 0\nv_mov_b32 v47, 0")
    for k in range(0, 72, 2):
        p.e(f"v_pk_add_f32 {v(F+k,2)}, {v(F+k,2)}, v[44:45] op_sel_hi:[1,0] neg_lo:[0,1] neg_hi:[0,1]")
        p.e(f"v_pk_fma_f32 v[46:47], {v(F+k,2)}, {v(F+k,2)}, v[46:47]")
        p.e(f"v_cvt_pk_bf16_f32 v{X+k//2}, v{F+k}, v{F+k+1}")
    p.e("v_add_f32 v46, v46, v47"); red8(46)
    p.e(f"v_mul_f32 v46, {f32(1.0/576)}, v46\nv_fma_f32 v46, -v6, v6, v46\nv_max_f32 v46, 0, v46")
    bf16r(p, "v46", "v46"); p.e(f"v_add_f32 v46, {f32(1e-5)}, v46"); bf16r(p, "v46", "v46")
    p.e("v_sqrt_f32 v46, v46"); bf16r(p, "v46", "v46"); p.e("v_rcp_f32 v44, v46")
    p.e(f"s_add_u32 s26, s86, {RI-NM}")
    p.vmem(f"buffer_store_dword v126, v127, {R(R_WS)}, s86 offen sc1", "st")
    p.vmem(f"buffer_store_dword v44, v127, {R(R_WS)}, s26 offen sc1", "st")
    for i in range(9):
        for j in range(4):
            r = X+4*i+j
            p.e(f"v_lshlrev_b32 v6, 16, v{r}\nv_and_b32 v7, 0xffff0000, v{r}\nv_pk_mul_f32 v[6:7], v[6:7], v[44:45] op_sel_hi:[1,0]\nv_cvt_pk_bf16_f32 v{r}, v6, v7")
        p.e(f"ds_write_b128 v30, {v(X+4*i,4)} offset:{128*i}")
    p.e("s_waitcnt lgkmcnt(0)\ns_barrier")
    stamp(p)
    p.lg = []
    for i in range(9): p.lds(f"ds_read_b128 {v(X+4*i,4)}, v31 offset:{32*i}", i)
    p.wait_vm("wc")
    stamp(p)
    for i in range(9):
        for c in range(3):
            D = 136 + 4*c
            p.e(f"v_mfma_f32_16x16x32_bf16 {v(D,4)}, {v(SEL,4)}, {a(36*c+4*i,4)}, {'0' if i==0 else v(D,4)}")
    p.e(f"s_mul_i32 s25, s3, {9*1024}\ns_add_u32 s25, s25, s69")
    for c in range(3):
        D = 136 + 4*c
        for e in range(4): p.e(f"v_add_f32_dpp v{D+e}, v{D+e}, v{D+e} row_ror:8 row_mask:0xf bank_mask:0xf")
        for e in (0, 2):
            p.e(f"""
            v_cvt_pk_bf16_f32 v133, v{D+e}, v{D+e+1}
            v_lshlrev_b32 v134, 16, v133
            v_and_b32 v135, 0xffff0000, v133
            v_sub_f32 v134, v{D+e}, v134
            v_sub_f32 v135, v{D+e+1}, v135
            v_cvt_pk_bf16_f32 v134, v134, v135
            v_cndmask_b32 v{D+e//2}, v133, v134, s[94:95]
            """)
    p.e("s_mov_b32 exec_hi, 0")
    for c in range(3): p.vmem(f"buffer_store_dwordx2 {v(136+4*c,2)}, v132, {R(R_WS)}, s96 offen offset:{128*c} sc1", "st")
    p.e("s_mov_b32 exec_hi, -1")
    p.wait_lg_all()
    for i in range(9):
        if i % 4 == 0: p.e(f"s_add_u32 s26, s25, {1024*i}")
        p.vmem(f"buffer_store_dwordx4 {v(X+4*i,4)}, v1, {R(R_WS)}, s26 offen offset:{1024*(i%4)} sc1", "xn")
    for k in range(6):
        srd(p, 12, P_ARE+2*k, 576*128*2)
        for c in range(3):
            p.e(f"s_lshl_b32 s25, s{90+c}, 8")
            p.vmem(f"buffer_load_dword v{PR+6*c+k}, v254, s[12:15], s25 offen", "prm")
    srd(p, R_W2, P_W2, SZ_W)
    p.e(f"""
    s_add_u32 s25, s88, 3
    s_lshl_b32 s25, s25, 7
    s_add_u32 s25, s25, s87
    s_mul_i32 s26, s3, {18*9216}
    s_add_u32 s25, s25, s26
    s_add_u32 s26, s25, {9*9216}
    s_lshr_b32 s97, s84, 1
    s_mul_i32 s97, s97, {1152*1152}
    s_lshl_b32 s27, s83, 2
    s_add_u32 s27, s27, s3
    s_mul_i32 s27, s27, {324*128}
    s_add_u32 s97, s97, s27
    """)
    def setflag(val):
        lab = newlabel("f")
        p.e(f"s_cmp_lg_u32 s3, 0\ns_cbranch_scc1 {lab}\ns_lshl_b32 s27, s66, 2\nv_mov_b32 v148, {val}")
        if val == 1:
            p.e(f"buffer_store_dword v148, v149, {R(R_WS)}, s5 offen sc1")
            p.e(f"v_lshlrev_b32 v150, 8, v0\nv_add_u32 v150, {192*256}, v150\nv_add_u32 v150, s27, v150")
            p.e(f"buffer_store_dword v148, v150, {R(R_WS)}, s5 offen sc1")
        if val == 3:
            p.e(f"""
            v_bfe_u32 v150, v0, 4, 1
            v_lshlrev_b32 v150, 3, v150
            v_add_u32 v150, s68, v150
            v_mul_u32_u24 v150, 1366, v150
            v_lshrrev_b32 v150, 16, v150
            v_mul_u32_u24 v151, 48, v150
            v_mul_u32_u24 v151, 7282, v151
            v_lshrrev_b32 v151, 16, v151
            v_sub_u32 v151, s66, v151
            v_lshlrev_b32 v151, 2, v151
            v_and_b32 v149, 7, v0
            v_mul_u32_u24 v149, 3, v149
            v_lshrrev_b32 v152, 2, v150
            v_add_u32 v149, v149, v152
            v_lshlrev_b32 v149, 3, v149
            v_and_b32 v152, 3, v150
            v_lshl_add_u32 v149, v152, 1, v149
            v_bfe_u32 v152, v0, 3, 1
            v_add_u32 v149, v149, v152
            v_lshl_add_u32 v149, v149, 8, v151
            v_add_u32 v149, 128, v149
            """)
            p.e(f"buffer_store_dword v148, v149, {R(R_WS)}, s5 offen sc1")
        p.e(f"buffer_store_dword v148, v24, {R(R_DBG)}, s27 offen sc1")
        p.e(f"{lab}:")
    stamp(p)
    p.wait_vm("xn")
    p.e("s_barrier")
    setflag(1)
    stamp(p)
    p.e("s_waitcnt vmcnt(0)"); p.vm = []
    p.e(f"buffer_load_dword a201, v33, {R(R_W1)}, s25 offen")
    p.e(f"buffer_load_dword a202, v33, {R(R_W1)}, s26 offen")
    stamp(p)
    p.e("s_call_b64 s[30:31], L_kgen".replace("s[30:31]", "s[6:7]"))
    stamp(p)
    p.e(f"s_mov_b32 s93, {TABSZ}")
    mbx_wait(p, f"buffer_load_dword v5, v254, {R(R_WS)}, s4 offen sc1", "v5", "v254", 1, None)
    p.e(f"""
    s_lshr_b32 s25, s68, 3
    s_lshl_b32 s26, s25, 3
    s_sub_u32 s82, s68, s26
    s_lshl_b32 s25, s25, 9
    s_mul_i32 s26, s3, {16*36864}
    s_add_u32 s25, s25, s26
    """)
    for i in range(16):
        if i: p.e(f"s_add_u32 s25, s25, 36864")
        p.e(f"buffer_load_dwordx4 {a(4*i,4)}, v1, {R(R_WS)}, s25 offen sc1")
    stamp(p)
    p.e("s_call_b64 s[6:7], L_kgen")
    stamp(p)
    p.e(f"""
    v_min_u32 v4, 29, v0
    v_lshlrev_b32 v4, 4, v4
    s_mul_i32 s26, s3, {UP}
    v_add_u32 v5, s26, v4
    ds_write_b128 v5, v[24:27] offset:{UBASE}
    ds_write_b128 v5, v[24:27] offset:{UBASE+4*UP}
    ds_write_b128 v4, v[24:27] offset:{UBASE+8*UP}
    v_lshrrev_b32 v4, 2, v20
    v_lshl_add_u32 v4, v21, 3, v4
    v_lshlrev_b32 v4, 4, v4
    v_bfe_u32 v5, v20, 1, 1
    v_lshl_add_u32 v4, v5, 9, v4
    v_and_b32 v5, 1, v20
    v_lshl_add_u32 v4, v5, 3, v4
    v_add_u32 v4, s67, v4
    v_subrev_u32 v5, s82, v20
    v_cmp_gt_u32 vcc, 9, v5
    v_mul_u32_u24 v5, {UP}, v5
    v_lshl_add_u32 v5, v21, 4, v5
    s_lshl_b32 s26, s3, 10
    v_add_u32 v5, s26, v5
    s_waitcnt vmcnt(3)
    """)
    TR = 112
    for i in range(16): p.e(f"ds_write_b128 v18, {a(4*i,4)} offset:{CP+1024*i}")
    for i in range(16):
        p.e(f"ds_read_b64_tr_b16 {v(TR+4*i,2)}, v4 offset:{CP+1024*i}\nds_read_b64_tr_b16 {v(TR+4*i+2,2)}, v4 offset:{CP+1024*i+64}")
    p.e("s_waitcnt lgkmcnt(0)\ns_and_saveexec_b64 s[26:27], vcc")
    for i in range(16): p.e(f"ds_write_b128 v5, {v(TR+4*i,4)} offset:{UBASE+480+64*i}")
    p.e("s_mov_b64 exec, s[26:27]")
    G = [28, 40]; PK = 52
    def expand(slot, dst):
        p.lg = []
        p.e(f"ds_write_b128 v2, v[24:27] offset:{dst+4096}")
        def gath(it):
            for k in range(11): p.lds(f"ds_read_u16 v{G[it&1]+k}, v{GA+11*it+k} offset:{slot*TABSZ}", ("g", it))
        gath(0)
        for it in range(4):
            p.wait_lg(("g", it))
            if it < 3: gath(it+1)
            g = G[it&1]
            for c in range(4):
                pk = PK + 16*(it&1) + 4*c
                for j in range(4):
                    i = c+2*j
                    p.e(f"v_lshl_or_b32 v{pk+j}, v{g+i+1}, 16, v{g+i}")
                p.lds(f"ds_write_b128 v18, {v(pk,4)} offset:{dst+CPS*c+1024*it}", ("c", it))
    CA = 28
    def ystore(sch):
        p.e(f"s_lshl_b32 s25, s{sch}, 12\ns_add_u32 s25, s25, {YT}")
        for jt in range(8):
            p.e(f"v_cvt_pk_bf16_f32 v{128+2*jt}, v{CA+4*jt}, v{CA+4*jt+1}\nv_cvt_pk_bf16_f32 v{129+2*jt}, v{CA+4*jt+2}, v{CA+4*jt+3}")
            p.e(f"buffer_store_dwordx2 {v(128+2*jt,2)}, v23, {R(R_WS)}, s25 offen offset:{512*jt} sc1")
    expand(0, CP)
    p.e("s_waitcnt lgkmcnt(0)\ns_barrier")
    stamp(p)
    p.e(f"""
    s_add_u32 s25, s67, {CP+64*6}
    v_add_u32 v6, s25, v19
    s_mul_i32 s25, s3, {UP}
    s_add_u32 s25, s25, {UBASE+64*6}
    v_add_u32 v7, s25, v22
    s_mov_b32 s81, 4
    s_call_b64 s[6:7], L_conv_pass
    """)
    stamp(p)
    ystore(70)
    p.e("s_cmp_lt_u32 s3, 2\ns_cbranch_scc1 L_p1\ns_cmp_eq_u32 s3, 3\ns_cbranch_scc1 L_e9\ns_call_b64 s[6:7], L_kgen\ns_branch L_p1\nL_e9:")
    expand(2, WSZ)
    p.e(f"v_mov_b32 v4, {FLG}\nv_mov_b32 v5, 1\nds_write_b32 v4, v5\ns_waitcnt lgkmcnt(0)")
    p.e("L_p1:")
    stamp(p)
    expand(1, CP)
    p.e(f"v_add_u32 v6, 512, v6\nv_add_u32 v7, {512+4*UP}, v7\ns_mov_b32 s81, 4")
    stamp(p)
    p.e("s_call_b64 s[6:7], L_conv_pass")
    stamp(p)
    ystore(71)
    p.e(f"""
    s_cmp_eq_u32 s3, 2
    s_cbranch_scc1 L_red
    v_mov_b32 v4, {FLG}
    L_wflag:
    ds_read_b32 v5, v4
    s_waitcnt lgkmcnt(0)
    v_cmp_eq_u32 vcc, 0, v5
    s_cbranch_vccnz L_wflag
    s_min_u32 s25, s3, 1
    s_lshl_b32 s25, s25, 1
    s_lshr_b32 s26, s3, 1
    s_add_u32 s25, s25, s26
    s_lshl_b32 s25, s25, 7
    s_sub_u32 s26, {CP9+64*6}, s25
    v_add_u32 v6, s26, v19
    s_sub_u32 s26, {UBASE+8*UP+64*6}, s25
    v_add_u32 v7, s26, v22
    s_cmp_eq_u32 s3, 0
    s_cselect_b32 s81, 2, 1
    s_call_b64 s[6:7], L_conv_pass
    """)
    for jt in range(8): p.e(f"ds_write_b128 v18, {v(CA+4*jt,4)} offset:{CP+1024*jt}")
    p.e("L_red:")
    stamp(p)
    p.e(f"""
    s_lshl_b32 s25, s3, 11
    s_add_u32 s25, s25, {WBASE+CP}
    v_add_u32 v4, s25, v1
    v_add_u32 v5, {3*WSZ}, v4
    s_waitcnt lgkmcnt(0)
    s_barrier
    """)
    for w, (vr, off) in enumerate(((4, 0), (4, WSZ), (5, 0))):
        for j in range(2): p.e(f"ds_read_b128 {v(64+8*w+4*j,4)}, v{vr} offset:{off+1024*j}")
    p.e(f"s_lshl_b32 s25, s72, 12\ns_add_u32 s25, s25, {YT}\ns_lshl_b32 s26, s3, 10\ns_add_u32 s25, s25, s26\ns_waitcnt lgkmcnt(0)")
    for r in range(0, 8, 2): p.e(f"v_pk_add_f32 {v(64+r,2)}, {v(64+r,2)}, {v(72+r,2)}")
    for r in range(0, 8, 2): p.e(f"v_pk_add_f32 {v(64+r,2)}, {v(64+r,2)}, {v(80+r,2)}")
    for r in range(0, 8, 2): p.e(f"v_cvt_pk_bf16_f32 v{96+r//2}, v{64+r}, v{65+r}")
    for j in range(2): p.e(f"buffer_store_dwordx2 {v(96+2*j,2)}, v23, {R(R_WS)}, s25 offen offset:{512*j} sc1")
    p.e("s_waitcnt vmcnt(0)\ns_barrier")
    setflag(3)
    stamp_end(p)
    p.e("s_endpgm")

    p.e("L_conv_pass:")
    AF = [128, 64]; BF = [160, 96]
    def loads(off, buf):
        out = []
        for k in range(8):
            oa = 512*(7-k) + off
            out.append(f"ds_read_b64 {v(AF[buf]+4*k,2)}, v6 offset:{oa}")
            out.append(f"ds_read_b64 {v(AF[buf]+4*k+2,2)}, v6 offset:{oa+8}")
            out.append(f"ds_read_b128 {v(BF[buf]+4*k,4)}, v7 offset:{512*k + off}")
        return out
    for t in loads(64, 0): p.e(t)
    p.e("s_waitcnt lgkmcnt(15)")
    for r in range(32): p.e(f"v_mov_b32 v{CA+r}, 0")
    p.e("L_conv:")
    for buf in range(2):
        p.e("s_waitcnt lgkmcnt(0)")
        if buf == 1: p.e("v_subrev_u32 v6, 128, v6\nv_subrev_u32 v7, 128, v7")
        nxt = loads(0 if buf == 0 else 64, buf ^ 1)
        cnt = 0
        for s1 in range(8):
            for dl in range(8-s1):
                jt = s1+dl
                p.e(f"v_mfma_f32_16x16x32_bf16 {v(CA+4*jt,4)}, {v(AF[buf]+4*s1,4)}, {v(BF[buf]+4*dl,4)}, {v(CA+4*jt,4)}")
                cnt += 1
                if nxt and cnt >= 2: p.e(nxt.pop(0))
    p.e("s_sub_u32 s81, s81, 1\ns_cmp_lg_u32 s81, 0\ns_cbranch_scc1 L_conv\ns_waitcnt lgkmcnt(0)\ns_nop 4\ns_setpc_b64 s[6:7]")

    p.e("L_kgen:")
    def w2touch():
        p.e(f"buffer_load_dword a203, v8, {R(R_W2)}, s97 offen\ns_add_u32 s97, s97, {54*128}")
    p.e(f"v_mov_b32 v4, {f32(LOG2E)}\nv_mul_f32 v4, s74, v4\nv_exp_f32 v4, v4")
    bf16r(p, "v4", "v4")
    U0 = 28
    for k in range(6):
        p.e(f"v_lshlrev_b32 v{U0+2*k}, 16, v{PR+k}\nv_and_b32 v{U0+2*k+1}, 0xffff0000, v{PR+k}")
    for k in range(4): p.e(f"v_pk_mul_f32 {v(U0+2*k,2)}, {v(U0+2*k,2)}, v[4:5] op_sel_hi:[1,0]")
    p.e(f"v_mul_f32 v28, {f32(LOG2E)}, v28\nv_mul_f32 v29, {f32(LOG2E)}, v29\nv_mul_f32 v30, {f32(INV2PI)}, v30\nv_mul_f32 v31, {f32(INV2PI)}, v31")
    Y, Z8, Z1, Q1, Q, P, P2, P4, P6, T1, T2 = 40, 44, 48, 52, 56, 60, 64, 68, 72, 76, 80
    Yb, Qb = 84, 88
    D0 = 96; dcnt = [0, 0]
    def cmul(d, x, y):
        return [f"v_pk_mul_f32 {v(d,2)}, {v(x,2)}, {v(y,2)}", f"v_pk_mul_f32 {v(d+2,2)}, {v(x,2)}, {v(y+2,2)}",
                f"v_pk_fma_f32 {v(d,2)}, {v(x+2,2)}, {v(y+2,2)}, {v(d,2)} neg_lo:[1,0,0] neg_hi:[1,0,0]",
                f"v_pk_fma_f32 {v(d+2,2)}, {v(x+2,2)}, {v(y,2)}, {v(d+2,2)}"]
    def put(row, x, ring=0):
        d = D0 + 8*ring + 2*(dcnt[ring] % 4); dcnt[ring] += 1
        return [f"v_cvt_pk_bf16_f32 v{d}, v{x}, v{x+2}", f"v_cvt_pk_bf16_f32 v{d+1}, v{x+1}, v{x+3}", f"ds_write_b64 v10, {v(d,2)} offset:{CP+row*KP}"]
    p.e(f"v_pk_mul_f32 {v(Y,2)}, v[36:37], v[32:33]")
    p.e(f"v_pk_mul_f32 {v(Y+2,2)}, v[36:37], v[34:35] neg_lo:[1,0] neg_hi:[1,0]")
    p.e(f"v_pk_fma_f32 {v(Y,2)}, v[38:39], v[34:35], {v(Y,2)} neg_lo:[1,0,0] neg_hi:[1,0,0]")
    p.e(f"v_pk_fma_f32 {v(Y+2,2)}, v[38:39], v[32:33], {v(Y+2,2)} neg_lo:[1,0,0] neg_hi:[1,0,0]")
    def direct(d, rho, conj):
        for n in range(2):
            p.e(f"v_mul_f32 v{T1+n}, {f32(float(rho))}, v{28+n}")
            p.e(f"v_mul_f32 v{T1+2+n}, {f32(float(-rho if conj else rho))}, v{30+n}")
        for n in range(2): p.e(f"v_fract_f32 v{T1+2+n}, v{T1+2+n}\nv_exp_f32 v{T1+n}, v{T1+n}")
        for n in range(2): p.e(f"v_cos_f32 v{d+n}, v{T1+2+n}\nv_sin_f32 v{d+2+n}, v{T1+2+n}")
        p.e(f"v_pk_mul_f32 {v(d,2)}, {v(d,2)}, {v(T1,2)}\nv_pk_mul_f32 {v(d+2,2)}, {v(d+2,2)}, {v(T1,2)}")
    direct(Z8, 8, True); direct(Z1, 1, False); direct(Q1, 128, False)
    def interleave(*streams):
        streams = [list(s) for s in streams]
        while any(streams):
            for s_ in streams:
                for _ in range(2):
                    if s_: p.e(s_.pop(0))
    sy = put(0, Y); cur, oth = Y, Yb
    for c in range(1, 16):
        sy += cmul(oth, cur, Z8) + put(c, oth); cur, oth = oth, cur
    sx = [f"v_mov_b32 v{T2}, 0x3f80", f"v_mov_b32 v{T2+1}, 0x3f80", f"ds_write_b64 v10, {v(T2,2)} offset:{CP+16*KP}"]
    sx += put(17, Z1, 1) + put(24, Q1, 1) + cmul(T1, Q1, Z1) + put(25, T1, 1)
    prev = Z1
    for k in range(2, 8):
        dst = {2: P2, 4: P4, 6: P6}.get(k, P)
        sx += cmul(dst, prev, Z1) + put(16+k, dst, 1) + cmul(T1, Q1, dst) + put(24+k, T1, 1); prev = dst
    interleave(sy[:60], sx[:60]); w2touch(); interleave(sy[60:], sx[60:])
    YF = 112; XF = 144; KA = 176
    for s_ in range(8):
        p.e(f"ds_read_b128 {v(YF+4*s_,4)}, v11 offset:{CP+16*s_}")
        p.e(f"ds_read_b128 {v(XF+4*s_,4)}, v11 offset:{CP+16*KP+16*s_}")
    w2touch()
    for t in cmul(Q, Q1, Q1) + cmul(Qb, Q, Q1): p.e(t)
    sa = put(0, Q)
    for i, pp in enumerate((P2, P4, P6)): sa += cmul(T1, Q, pp) + put(1+i, T1)
    sb = put(4, Qb)
    for i, pp in enumerate((P2, P4, P6)): sb += cmul(T2, Qb, pp) + put(5+i, T2)
    sc = cmul(Y, Qb, Q1); cur, oth = Y, Yb
    for m_ in range(4, 17):
        row = 8+2*(m_-4) if m_ < 8 else 16 + (m_-8)
        sc += put(row, cur, 1)
        if m_ < 8: sc += cmul(P, cur, P4) + put(row+1, P, 1)
        if m_ < 16: sc += cmul(oth, cur, Q1); cur, oth = oth, cur
    interleave(sa + sb, sc[:48]); w2touch(); interleave(sc[48:])
    X1F = 28; X2F = 60
    p.lg = []
    for s_ in range(8): p.lds(f"ds_read_b128 {v(X1F+4*s_,4)}, v11 offset:{CP+16*s_}", ("a", s_))
    p.e("s_waitcnt lgkmcnt(8)")
    for s_ in range(8):
        p.e(f"v_mfma_f32_16x16x32_bf16 {v(KA,4)}, {v(XF+4*s_,4)}, {v(YF+4*s_,4)}, {'0' if s_==0 else v(KA,4)}")
        p.lds(f"ds_read_b128 {v(X2F+4*s_,4)}, v11 offset:{CP+16*KP+16*s_}", ("b", s_))
    p.wait_lg(("a", 7))
    for s_ in range(8): p.e(f"v_mfma_f32_16x16x32_bf16 {v(KA+4,4)}, {v(X1F+4*s_,4)}, {v(YF+4*s_,4)}, {'0' if s_==0 else v(KA+4,4)}")
    p.e(f"v_cmp_eq_u32 vcc, 0, v0\nv_mov_b32 v4, s77\nv_cndmask_b32 v4, 0, v4, vcc\nv_add_f32 v{KA}, v{KA}, v4")
    p.e(f"v_cvt_pk_bf16_f32 v96, v{KA}, v{KA+1}\nv_cvt_pk_bf16_f32 v97, v{KA+2}, v{KA+3}")
    p.wait_lg(("b", 7))
    for s_ in range(8): p.e(f"v_mfma_f32_16x16x32_bf16 {v(KA+8,4)}, {v(X2F+4*s_,4)}, {v(YF+4*s_,4)}, {'0' if s_==0 else v(KA+8,4)}")
    p.e(f"""
    ds_write_b16 v3, v96
    ds_write_b16_d16_hi v12, v96
    ds_write_b16 v12, v97 offset:{TPL}
    ds_write_b16_d16_hi v12, v97 offset:{2*TPL}
    v_cvt_pk_bf16_f32 v98, v{KA+4}, v{KA+5}
    v_cvt_pk_bf16_f32 v99, v{KA+6}, v{KA+7}
    ds_write_b16 v13, v98
    ds_write_b16_d16_hi v14, v98
    ds_write_b16 v15, v99
    ds_write_b16_d16_hi v16, v99
    ds_write_b32 v9, v24 offset:{ZOFF}
    v_cvt_pk_bf16_f32 v100, v{KA+8}, v{KA+9}
    v_cvt_pk_bf16_f32 v101, v{KA+10}, v{KA+11}
    ds_write_b16 v17, v100 offset:{7*TPL+256}
    ds_write_b16_d16_hi v17, v100 offset:{7*TPL+256+32}
    ds_write_b16 v17, v101 offset:{7*TPL+256+64}
    ds_write_b16_d16_hi v17, v101 offset:{7*TPL+256+96}
    """)
    for r in (3, 9, 12, 13, 14, 15, 16, 17): p.e(f"v_add_u32 v{r}, s93, v{r}")
    for k in range(12): p.e(f"v_mov_b32 v{PR+k}, v{PR+6+k}")
    p.e("s_mov_b32 s74, s75\ns_mov_b32 s75, s76\ns_mov_b32 s77, s78\ns_mov_b32 s78, s79\ns_setpc_b64 s[6:7]")

def build(path):
    p = Prog()
    p.e(f".globl {KNAME}"); p.e(".p2align 8"); p.e(f".type {KNAME},@function"); p.e(f"{KNAME}:")
    p.e(f"""
    s_cmp_ge_u32 s2, 256
    s_cbranch_scc1 L_exit
    s_load_dwordx16 s[36:51], s[0:1], 0
    s_load_dwordx8 s[52:59], s[0:1], 64
    s_load_dwordx4 s[60:63], s[0:1], 96
    s_load_dwordx2 s[64:65], s[0:1], 112
    v_lshrrev_b32 v1, 6, v0
    v_and_b32 v0, 63, v0
    v_readfirstlane_b32 s3, v1
    s_and_b32 s23, s2, 7
    s_lshr_b32 s24, s2, 3
    s_cmp_ge_u32 s24, 24
    s_cbranch_scc1 L_ssm
    """)
    mlp_role(p)
    p.e("L_exit:"); p.e("s_endpgm")
    p.e("L_ssm:")
    ssm_role(p)
    p.e("L_code_end:")
    ref = open(f"cdna_kernels/{NAME}.s.ref").read().split("\n")
    head = [l for l in ref if l.startswith(";") and "@launch" not in l]
    out = "\n".join(head) + "\n"
    out += f"; @launch grid=(256,1,1) block=(256,1,1) lds={LDS_BYTES}\n"
    out += '.amdgcn_target "amdgcn-amd-amdhsa--gfx950"\n.text\n' + p.text()
    out += f""".section .rodata,"a"
.p2align 6
.amdhsa_kernel {KNAME}
  .amdhsa_next_free_vgpr 512
  .amdhsa_next_free_sgpr 102
  .amdhsa_accum_offset 256
  .amdhsa_group_segment_fixed_size 0
  .amdhsa_kernarg_size 120
  .amdhsa_user_sgpr_count 2
  .amdhsa_user_sgpr_kernarg_segment_ptr 1
  .amdhsa_system_sgpr_workgroup_id_x 1
.end_amdhsa_kernel
"""
    open(path, "w").write(out)
    print("wrote", path, len(out), "bytes; nops added", p.nops_added)

if __name__ == "__main__":
    args = sys.argv[1:]
    if "-s" in args: STAMP = True; args.remove("-s")
    for a_ in list(args):
        if "=" in a_:
            k, val = a_.split("="); OPT[k] = int(val); args.remove(a_)
    build(args[0] if args else f"cdna_kernels/{NAME}.s")
```
